```python
import torch

def _softmax(x, axis=-1):
    return torch.softmax(x, dim=axis)

def _gelu(x):
    return torch.nn.functional.gelu(x, approximate='tanh')

def _silu(x):
    return torch.nn.functional.silu(x)

def _sigmoid(x):
    return torch.sigmoid(x)

def _layernorm(x, axis=-1, eps=1e-05):
    m = x.mean(dim=axis, keepdim=True)
    v = x.var(dim=axis, keepdim=True, unbiased=False)
    return (x - m) / torch.sqrt(v + eps)

def _scatter_add(tgt, idx, src, axis=0):
    return tgt.clone().index_add_(axis, idx, src)

def _segment_sum(src, seg, n):
    out = torch.zeros((n,) + src.shape[1:], dtype=src.dtype)
    return out.index_add_(0, seg, src)

def _pad(x, pw):
    flat = tuple((v for pair in reversed(pw) for v in pair))
    return torch.nn.functional.pad(x, flat)
kernel_name = 'adaLN_cond__gqa_block_cached__swiglu_ffn__prompt'

def setup_inputs():

    _w = lambda a: (lambda t: t.to(torch.bfloat16) if t.is_floating_point() else t)(torch.as_tensor(a))

    def _A_setup():
        B, Sq, D = (1, 2048, 576)
        Hq, Hkv, Sk, Dh = (32, 16, 2048, 128)
        assert Hq % Hkv == 0, (Hq, Hkv)
        return {'x': _w((lambda *s: torch.randn(*s, dtype=torch.bfloat16) * 0.05)(B, Sq, D)), 'k_cache': _w((lambda *s: torch.randn(*s, dtype=torch.bfloat16) * 3.2)(B, Hkv, Sk, Dh)), 'v_cache': _w((lambda *s: torch.randn(*s, dtype=torch.bfloat16) * 0.4)(B, Hkv, Sk, Dh)), 'wq': _w((lambda *s: torch.randn(*s, dtype=torch.bfloat16) * 3.2)(D, Hq * Dh) * D ** (-0.5)), 'wo': _w((lambda *s: torch.randn(*s, dtype=torch.bfloat16) * 0.4)(Hq * Dh, D) * (Hq * Dh) ** (-0.5))}
    _A_in = _A_setup()

    def _B_setup():
        B, S, D, F = (1, 2048, 576, 4608)
        return {'x': _w((lambda *s: torch.randn(*s, dtype=torch.bfloat16) * 0.05)(B, S, D)), 'w_gate': _w((lambda *s: torch.randn(*s, dtype=torch.bfloat16) * 0.05)(D, F)), 'w_up': _w((lambda *s: torch.randn(*s, dtype=torch.bfloat16) * 0.05)(D, F)), 'w_down': _w((lambda *s: torch.randn(*s, dtype=torch.bfloat16) * 0.05)(F, D))}
    _B_in = _B_setup()
    return {'A_x': _A_in['x'], 'A_k_cache': _A_in['k_cache'], 'A_v_cache': _A_in['v_cache'], 'A_wq': _A_in['wq'], 'A_wo': _A_in['wo'], 'B_x': _B_in['x'], 'B_w_gate': _B_in['w_gate'], 'B_w_up': _B_in['w_up'], 'B_w_down': _B_in['w_down'], 'c': _w((lambda *s: torch.randn(*s, dtype=torch.bfloat16) * 0.1)(1, 576) * 8.0), 'w_mod': _w((lambda *s: torch.randn(*s, dtype=torch.bfloat16) * 0.1)(576, 6 * 576) * 576 ** (-0.5) * 8.0)}

def reference(A_x, A_k_cache, A_v_cache, A_wq, A_wo, B_x, B_w_gate, B_w_up, B_w_down, c, w_mod):

    def _A_ref(x, k_cache, v_cache, wq, wo):
        B, Sq, D = x.shape
        Hq, Dh = (32, 128)
        Hkv = k_cache.shape[1]
        rep = Hq // Hkv
        q = (lambda x, *d: x.permute(*d))((x @ wq).reshape(B, Sq, Hq, Dh), 0, 2, 1, 3)
        k = (lambda x, n, axis: torch.repeat_interleave(x, n, dim=axis))(k_cache, rep, axis=1)
        v = (lambda x, n, axis: torch.repeat_interleave(x, n, dim=axis))(v_cache, rep, axis=1)
        scores = torch.einsum('bhqd,bhkd->bhqk', q, k) * Dh ** (-0.5)
        p = _softmax(scores, axis=-1)
        o = torch.einsum('bhqk,bhkd->bhqd', p, v)
        return (lambda x, *d: x.permute(*d))(o, 0, 2, 1, 3).reshape(B, Sq, Hq * Dh) @ wo

    def _B_ref(x, w_gate, w_up, w_down):
        g = _silu(x @ w_gate)
        u = x @ w_up
        return g * u @ w_down
    x = A_x
    mod = (_silu(c) @ w_mod).reshape(c.shape[0], 6, 1, -1)
    sa, ca, ga, sb, cb, gb = (mod[:, 0].clone(), mod[:, 1].clone(), mod[:, 2].clone(), mod[:, 3].clone(), mod[:, 4].clone(), mod[:, 5].clone())
    h = _layernorm(x, axis=-1) * (1 + ca) + sa
    x = x + ga * _A_ref(h, A_k_cache, A_v_cache, A_wq, A_wo)
    h = _layernorm(x, axis=-1) * (1 + cb) + sb
    x = x + gb * _B_ref(h, B_w_gate, B_w_up, B_w_down)
    return x
```

```python
from base import *
from gemm import mfma, gemm_stream, lane_dec

S = lambda par, hd: par * 32 + hd * 16
P = lambda par, hd, ks: 64 + par * 16 + hd * 8 + ks * 4
NEGM = lambda hd: 96 + hd * 16
ET, LS, PS, TMP = 128, 136, 138, 140
KA, VA, KD0, KD1, VD = 144, 152, 156, 157, 158
O = lambda hd, db: hd * 64 + db * 16
Q = lambda hd, s: 128 + (hd * 8 + s) * 4
KF = lambda s: 192 + 4 * s
VF = lambda ks, db: 224 + 4 * (ks * 4 + db)
KBASE, VBASE, WBASE = 0, 32768, 65536
QSCALE = 0x3e0293ee
THRESH = 0x4f800000

def softmax_ops(par):
    ops = []
    seq = [(hd, j) for hd in range(2) for j in range(16)]
    et = lambda i: ET + i % 8
    for i in range(len(seq) + 1):
        g = []
        if i < len(seq):
            hd, j = seq[i]
            g.append('v_exp_f32 v%d, v%d' % (et(i), S(par, hd) + j))
        if i >= 1:
            hd, j = seq[i - 1]
            if j == 1: g.append('v_add_f32 v%d, v%d, v%d' % (PS + hd, et(i - 2), et(i - 1)))
            elif j > 1: g.append('v_add_f32 v%d, v%d, v%d' % (PS + hd, PS + hd, et(i - 1)))
            if j % 2 == 1:
                g.append('v_cvt_pk_bf16_f32 v%d, v%d, v%d' % (P(par, hd, j // 8) + (j % 8) // 2, et(i - 2), et(i - 1)))
        ops.append(g)
    return ops

def kread(s, slot): return 'ds_read_b128 %s, v%d offset:%d' % (ar(KF(s)), KA + s, slot * 8192)
def vread(ks, db, jj, slot):
    return 'ds_read_b64_tr_b16 %s, v%d offset:%d' % (ar(VF(ks, db) + 2 * jj, 2), VA + db, slot * 8192 + (16 * ks + 8 * jj) * 256)

def dma_k(k, slot):
    return [['s_add_u32 m0, s41, %d' % (KBASE + slot * 8192), 's_nop 0',
             'buffer_load_dwordx4 v%d, s[20:23], s42 offen lds' % KD0],
            ['buffer_load_dwordx4 v%d, s[20:23], s42 offen offset:2048 lds' % KD1]]
def dma_v(k, slot):
    return [['s_add_u32 m0, s41, %d' % (VBASE + slot * 8192), 's_nop 0',
             'buffer_load_dwordx4 v%d, s[24:27], s43 offen lds' % VD],
            ['buffer_load_dwordx4 v%d, s[24:27], s43 offen offset:2048 lds' % VD]]

def qk_mfmas(par):
    return [('v_mfma_f32_32x32x16_bf16 %s, %s, %s, %s' % (vr(S(par, hd), 16), ar(KF(s)), ar(Q(hd, s)),
             vr(NEGM(hd), 16) if s == 0 else vr(S(par, hd), 16))) for s in range(8) for hd in range(2)]
def pv_mfmas(par):
    return [('v_mfma_f32_32x32x16_bf16 %s, %s, %s, %s' % (ar(O(hd, db), 16), ar(VF(ks, db)), vr(P(par, hd, ks)), ar(O(hd, db), 16)))
            for ks in range(2) for db in range(4) for hd in range(2)]

def rescale(k, par, init):
    k.e('s_nop 15', 's_nop 7')
    for hd in range(2):
        s, d = S(par, hd), TMP
        k.e('v_max3_f32 v%d, v%d, v%d, v%d' % (d, s, s + 1, s + 2))
        for j in range(3, 15, 2): k.e('v_max3_f32 v%d, v%d, v%d, v%d' % (d, d, s + j, s + j + 1))
        k.e('v_max_f32 v%d, v%d, v%d' % (d, d, s + 15), 'v_mov_b32 v%d, v%d' % (d + 1, d), 's_nop 1',
            'v_permlane32_swap_b32 v%d, v%d' % (d, d + 1), 's_nop 1', 'v_max_f32 v%d, v%d, v%d' % (d, d, d + 1))
        if not init: k.e('v_max_f32 v%d, 0, v%d' % (d, d))
        for j in range(16):
            k.e('v_sub_f32 v%d, v%d, v%d' % (s + j, s + j, d),
                'v_sub_f32 v%d, v%d, v%d' % (S(par ^ 1, hd) + j, S(par ^ 1, hd) + j, d),
                'v_sub_f32 v%d, v%d, v%d' % (NEGM(hd) + j, NEGM(hd) + j, d))
        if not init:
            k.e('v_sub_f32 v%d, 0, v%d' % (d + 1, d), 'v_exp_f32 v%d, v%d' % (d + 1, d + 1), 's_nop 0',
                'v_mul_f32 v%d, v%d, v%d' % (LS + hd, LS + hd, d + 1))
            for r in range(0, 64, 4):
                for j in range(4): k.e('v_accvgpr_read_b32 v%d, a%d' % (ET + j, hd * 64 + r + j))
                for j in range(4): k.e('v_mul_f32 v%d, v%d, v%d' % (ET + j, ET + j, d + 1))
                for j in range(4): k.e('v_accvgpr_write_b32 a%d, v%d' % (hd * 64 + r + j, ET + j))
    for g in softmax_ops(par):
        k.e(*g)
        k.e('s_nop 0')
    k.e('s_nop 1')

def window(k, w4, do_qk=True, do_sm=True, kdma=True, vdma=True, kpre=True, tag=''):
    par = w4 & 1
    k.e('s_waitcnt vmcnt(%d) lgkmcnt(0)' % WAITN[0], 's_barrier')
    WAITN[0] = 2 * (kdma + vdma)
    qk = qk_mfmas(par) if do_qk else []
    pv = pv_mfmas(par)
    mf = qk + pv
    fill = [[] for _ in mf]
    vrd = [vread(ks, db, jj, w4) for ks in range(2) for db in range(4) for jj in range(2)]
    pre = []
    if do_qk:
        for i, r in enumerate(vrd): fill[(i * 3) // 4].append(r)
    else: pre = vrd
    npv0 = len(qk)
    if kpre:
        for s in range(8): fill[npv0 + s + 1].append(kread(s, (w4 + 3) % 4))
    dm = (dma_k(k, (w4 + 1) % 4) if kdma else []) + (dma_v(k, (w4 + 2) % 4) if vdma else [])
    pos = [13, 15, 27, 29] if do_qk else [10, 11, 12, 13]
    for i, d in enumerate(dm): fill[pos[i]] += d
    if dm: fill[pos[-1] + 1] += ['s_add_u32 s42, s42, 8192', 's_add_u32 s43, s43, 8192']
    if do_sm:
        ops = softmax_ops(par ^ 1)
        n = len(mf)
        if n == 32:
            for i, g in enumerate(ops): fill[min(i, 31)] = g + fill[min(i, 31)] if i < 32 else fill[31] + g
        else:
            for i, g in enumerate(ops): fill[min(i // 2, n - 1)] += g + (['s_nop 0'] if i % 2 == 0 else [])
    k.e(*pre)
    for i, m in enumerate(mf):
        if i == npv0: k.e('s_waitcnt lgkmcnt(0)')
        k.e(m)
        k.e(*fill[i])
    if do_sm:
        lab = 'att_%s%d' % (tag, w4)
        k.e('v_max_f32 v%d, v%d, v%d' % (TMP, PS, PS + 1), 'v_cmp_nge_f32 vcc, s44, v%d' % TMP,
            's_cbranch_vccnz %s_slow' % lab, '%s_back:' % lab,
            'v_add_f32 v%d, v%d, v%d' % (LS, LS, PS), 'v_add_f32 v%d, v%d, v%d' % (LS + 1, LS + 1, PS + 1))
        STUBS.append((lab, par ^ 1))

WAITN = [0]
STUBS = []

def attn_kernel(name):
    k = K(name, 256, 256)
    k.guard(256)
    k.ptr(4, 'k'); k.ptr(6, 'v'); k.ptr(8, 'wq'); k.ptr(10, 'ws')
    lane_dec(k)
    k.e('s_and_b32 s12, s2, 7', 's_lshl_b32 s12, s12, 1', 's_bfe_u32 s13, s2, 0x10003', 's_add_u32 s12, s12, s13',
        's_lshr_b32 s13, s2, 4', 's_lshl_b32 s14, s13, 2', 's_add_u32 s14, s14, s40',
        's_lshl_b32 s15, s12, 19', 's_sub_u32 s16, %d, s15' % (16 << 19), 's_lshl_b32 s17, s12, 9',
        's_and_b32 s18, s40, 1', 's_lshr_b32 s19, s40, 1', 's_lshl_b32 s19, s19, 2', 's_add_u32 s18, s18, s19',
        's_lshl_b32 s41, s18, 10', 's_mov_b32 s44, 0x%x' % THRESH)
    k.e('v_and_b32 v6, 31, v1', 'v_and_b32 v7, 15, v1', 'v_xor_b32 v7, v7, v2', 'v_lshlrev_b32 v8, 8, v6')
    for s in range(8):
        k.e('v_xor_b32 v9, %d, v7' % (2 * s), 'v_lshl_add_u32 v%d, v9, 4, v8' % (KA + s))
    k.e('v_lshl_add_u32 v6, v2, 2, v3', 'v_lshlrev_b32 v6, 8, v6', 'v_lshl_add_u32 v6, v4, 5, v6', 'v_add_u32 v6, v6, v5',
        'v_add_u32 v6, %d, v6' % VBASE)
    for db in range(4):
        k.e('v_xor_b32 v9, %d, v3' % db, 'v_lshl_add_u32 v%d, v9, 6, v6' % (VA + db))
    k.e('v_lshrrev_b32 v6, 4, v1', 'v_and_b32 v7, 15, v1')
    for jx, reg in ((0, KD0), (1, KD1)):
        k.e('s_add_u32 s19, s18, %d' % (2 * jx), 's_lshl_b32 s19, s19, 2', 'v_add_u32 v8, s19, v6',
            'v_and_b32 v9, 15, v8', 'v_xor_b32 v9, v9, v7', 'v_lshlrev_b32 v9, 4, v9', 'v_lshl_add_u32 v%d, v8, 8, v9' % reg)
    k.e('v_subrev_u32 v%d, 2048, v%d' % (KD1, KD1))
    k.e('s_lshl_b32 s19, s18, 2', 'v_add_u32 v8, s19, v6', 'v_lshlrev_b32 v9, 2, v6', 'v_xor_b32 v9, v9, v7',
        'v_lshlrev_b32 v9, 4, v9', 'v_lshl_add_u32 v%d, v8, 8, v9' % VD)
    k.e('v_lshrrev_b32 v6, 5, v1', 's_lshl_b32 s19, s40, 1', 'v_add_u32 v6, s19, v6', 'v_and_b32 v7, 3, v6',
        'v_lshlrev_b32 v7, 2, v7', 'v_and_b32 v8, 31, v1', 'v_xor_b32 v7, v7, v8', 'v_lshlrev_b32 v7, 4, v7',
        'v_lshlrev_b32 v6, 13, v6', 'v_add3_u32 v159, v6, v7, s17', 's_lshl_b32 s45, s40, 10',
        'v_lshl_add_u32 v6, v2, 3, v3', 'v_lshlrev_b32 v6, 9, v6', 'v_lshl_add_u32 v6, v4, 5, v6', 'v_add_u32 v6, v6, v5',
        'v_add_u32 v6, %d, v6' % WBASE)
    for q in range(4):
        k.e('v_xor_b32 v9, %d, v3' % q, 'v_lshl_add_u32 v%d, v9, 6, v6' % (188 + q))
    k.e('s_mul_i32 s19, s14, %d' % (36 * 1024), 'v_lshlrev_b32 v160, 4, v1', 'v_add_u32 v160, s19, v160',
        'v_lshlrev_b32 v161, 4, v1', 's_waitcnt lgkmcnt(0)')
    k.srd(20, 4, 's15', 's16'); k.srd(24, 6, 's15', 's16')
    k.srd(28, 8, 0, 576 * 8192); k.srd(32, 10, WS_HF, 2048 * 1152); k.srd(36, 10, WS_OF, 2048 * 8192)
    def wdma(st):
        def mk(jx):
            def f():
                k.e('s_add_u32 m0, s45, %d' % (WBASE + (st % 4) * 16384 + jx * 4096),
                    's_mov_b32 s46, %d' % ((st * 32 + 8 * jx) * 8192))
                k.vmem('buffer_load_dwordx4 v159, s[28:31], s46 offen lds', ('W', st))
            return f
        return [mk(j) for j in range(4)]
    for f in wdma(0) + wdma(1): f()
    for ks in range(36):
        if ks % 4 == 0: k.e('s_mov_b32 s47, %d' % (ks * 1024))
        k.vmem('buffer_load_dwordx4 %s, v160, s[32:35], s47 offen offset:%d' % (vr(4 * ks), (ks % 4) * 1024), ('B', ks))
    for u in range(4):
        k.e('s_mov_b32 s42, %d' % (u * 8192))
        for g in dma_k(k, u):
            k.e(*g[:-1]); k.vmem(g[-1], 'KV')
    for u in range(2):
        k.e('s_mov_b32 s43, %d' % (u * 8192))
        for g in dma_v(k, u):
            k.e(*g[:-1]); k.vmem(g[-1], 'KV')
    seen = set()
    def breg(ks):
        if ks not in seen:
            seen.add(ks); k.wait_vm(('B', ks))
        return vr(4 * ks)
    gemm_stream(k, 8, 18, 2, lambda nb, kk, jj, sl: (188 + (nb & 3), sl * 16384 + (16 * kk + 4 * jj) * 512 + (nb >> 2) * 256),
                wdma, None, breg, lambda nb: ar(16 * nb, 16), 162, 5, pre_dma=2, bdist=0, pre_done=True)
    k.e('s_nop 15', 's_mov_b32 s46, 0x%x' % QSCALE)
    for hd in range(2):
        for s in range(8):
            src = 16 * (hd * 4 + s // 2) + 8 * (s % 2)
            for j in range(8): k.e('v_accvgpr_read_b32 v%d, a%d' % (j, src + j))
            for j in range(8): k.e('v_mul_f32 v%d, s46, v%d' % (j, j))
            for i in range(4): k.e('v_cvt_pk_bf16_f32 v%d, v%d, v%d' % (8 + i, 2 * i, 2 * i + 1))
            for i in range(4): k.e('v_accvgpr_write_b32 a%d, v%d' % (Q(hd, s) + i, 8 + i))
    for r in range(128): k.e('v_accvgpr_write_b32 a%d, 0' % r)
    for r in range(32): k.e('v_mov_b32 v%d, 0' % (NEGM(0) + r))
    k.e('v_mov_b32 v%d, 0' % LS, 'v_mov_b32 v%d, 0' % (LS + 1))
    k.wait_all()
    k.e('s_barrier')
    for u in range(2):
        for s in range(8): k.e(kread(s, u))
        k.e('s_waitcnt lgkmcnt(0)')
        k.e(*qk_mfmas(u))
        k.e('s_nop 7')
    k.e('s_barrier', 's_mov_b32 s42, %d' % (4 * 8192))
    for g in dma_k(k, 0): k.e(*g)
    for s in range(8): k.e(kread(s, 2))
    rescale(k, 0, True)
    k.e('v_add_f32 v%d, v%d, v%d' % (LS, LS, PS), 'v_add_f32 v%d, v%d, v%d' % (LS + 1, LS + 1, PS + 1),
        's_mov_b32 s42, %d' % (5 * 8192), 's_mov_b32 s43, %d' % (2 * 8192), 's_mov_b32 s47, 14', '.p2align 3', 'att_loop:')
    WAITN[0] = 4
    for w4 in range(4): window(k, w4, tag='L')
    k.e('s_sub_u32 s47, s47, 1', 's_cmp_lg_u32 s47, 0', 's_cbranch_scc1 att_loop')
    for w in range(56, 64):
        window(k, w % 4, do_qk=w <= 61, do_sm=w <= 62, kdma=w <= 58, vdma=w <= 61, kpre=w <= 60, tag='T%d_' % w)
    k.e('s_nop 15', 's_lshl_b32 s19, s14, 8', 's_lshl_b32 s13, s12, 4', 's_add_u32 s19, s19, s13', 's_lshl_b32 s19, s19, 10')
    for hd in range(2):
        k.e('v_mov_b32 v0, v%d' % (LS + hd), 'v_mov_b32 v1, v%d' % (LS + hd), 's_nop 1', 'v_permlane32_swap_b32 v0, v1',
            's_nop 1', 'v_add_f32 v0, v0, v1', 'v_rcp_f32 v0, v0', 's_nop 0')
        for db in range(4):
            for sp in range(2):
                t = 16 + 16 * ((db * 2 + sp) % 4)
                src = O(hd, db) + 8 * sp
                for j in range(8): k.e('v_accvgpr_read_b32 v%d, a%d' % (t + j, src + j))
                for j in range(8): k.e('v_mul_f32 v%d, v%d, v0' % (t + j, t + j))
                for i in range(4): k.e('v_cvt_pk_bf16_f32 v%d, v%d, v%d' % (t + 8 + i, t + 2 * i, t + 2 * i + 1))
                k.e('s_add_u32 s13, s19, %d' % ((hd * 8 + 2 * db + sp) * 1024),
                    'buffer_store_dwordx4 %s, v161, s[36:39], s13 offen' % vr(t + 8))
    k.e('s_waitcnt vmcnt(0)')
    t = K('x', 0)
    for lab, par in STUBS:
        t.e('%s_slow:' % lab, 's_call_b64 s[48:49], att_sub%d' % par, 's_branch %s_back' % lab)
    for par in range(2):
        t.e('att_sub%d:' % par)
        rescale(t, par, False)
        t.e('s_setpc_b64 s[48:49]')
    k.tail = t.L
    return k
```

```python
WS_MOD, WS_HF, WS_H2F, WS_X1 = 0x0, 0x10000, 0x300000, 0x600000
WS_OF, WS_ACT, WS_PART = 0x1000000, 0x2000000, 0x4000000
PART_SZ = 2048 * 576 * 4
ARG = dict(x=0, k=8, v=16, wq=24, wo=32, wg=48, wu=56, wd=64, c=72, wmod=80, out=88, ws=104)
LOG2E = 0x3fb8aa3b
SW = [0, 2, 1, 3]

class K:
    def __init__(s, name, vgpr, agpr=0):
        s.name, s.L, s.vm, s.vgpr, s.agpr = name, [], [], vgpr, agpr
    def e(s, *lines):
        for l in lines: s.L.append(l if l.endswith(':') else '    ' + l)
    def vmem(s, line, tag=None):
        s.e(line); s.vm.append(tag)
    def wait_vm(s, tag, extra=''):
        idx = [i for i, t in enumerate(s.vm) if t == tag]
        if not idx:
            if extra: s.e('s_waitcnt ' + extra)
            return
        n = len(s.vm) - 1 - idx[-1]
        s.e('s_waitcnt vmcnt(%d) %s' % (min(n, 63), extra))
        s.vm = s.vm[idx[-1] + 1:]
    def wait_all(s):
        s.e('s_waitcnt vmcnt(0) lgkmcnt(0)'); s.vm = []
    def ptr(s, reg, arg):
        s.e('s_load_dwordx2 s[%d:%d], s[0:1], %d' % (reg, reg + 1, ARG[arg]))
    def srd(s, d, p, off, size):
        s.e('s_add_u32 s%d, s%d, %s' % (d, p, off), 's_addc_u32 s%d, s%d, 0' % (d + 1, p + 1),
            's_mov_b32 s%d, %s' % (d + 2, size), 's_mov_b32 s%d, 0x20000' % (d + 3))
    def guard(s, n):
        s.e('s_cmp_ge_u32 s2, %d' % n, 's_cbranch_scc1 %s_end' % s.name)
    def text(s):
        acc = (s.vgpr + 3) // 4 * 4
        tot = acc + s.agpr if s.agpr else s.vgpr
        h = ['.text', '.globl %s' % s.name, '.p2align 8', '.type %s,@function' % s.name, s.name + ':']
        t = ['%s_end:' % s.name, '    s_endpgm'] + getattr(s, 'tail', [])
        d = ['.section .rodata,"a"', '.p2align 6', '.amdhsa_kernel %s' % s.name,
             '  .amdhsa_next_free_vgpr %d' % tot, '  .amdhsa_next_free_sgpr 96',
             '  .amdhsa_accum_offset %d' % acc, '  .amdhsa_group_segment_fixed_size 0',
             '  .amdhsa_kernarg_size 112', '  .amdhsa_user_sgpr_count 2',
             '  .amdhsa_user_sgpr_kernarg_segment_ptr 1', '  .amdhsa_system_sgpr_workgroup_id_x 1',
             '.end_amdhsa_kernel']
        return '\n'.join(h + s.L + t + d) + '\n'

def vr(b, n=4): return 'v[%d:%d]' % (b, b + n - 1)
def ar(b, n=4): return 'a[%d:%d]' % (b, b + n - 1)

def unpack8(k, dst, src):
    for i in range(4):
        k.e('v_lshlrev_b32 v%d, 16, v%d' % (dst + 2 * i, src + i),
            'v_and_b32 v%d, 0xffff0000, v%d' % (dst + 2 * i + 1, src + i))

def round8(k, v, tmp):
    for i in range(4): k.e('v_cvt_pk_bf16_f32 v%d, v%d, v%d' % (tmp + i, v + 2 * i, v + 2 * i + 1))
    unpack8(k, v, tmp)

def gemv_kernel():
    k = K('k0_mod_kernel', 64)
    k.guard(108)
    k.ptr(4, 'c'); k.ptr(6, 'wmod'); k.ptr(8, 'ws')
    k.e('v_and_b32 v1, 3, v0', 'v_lshrrev_b32 v2, 2, v0', 's_lshl_b32 s3, s2, 6',
        'v_mul_u32_u24 v3, 6912, v2', 'v_lshl_add_u32 v3, v1, 4, v3', 'v_add_u32 v3, s3, v3',
        'v_lshlrev_b32 v4, 1, v2', 's_waitcnt lgkmcnt(0)')
    k.srd(12, 4, 0, 1152); k.srd(16, 6, 0, 576 * 6912); k.srd(20, 8, WS_MOD, 3456 * 4)
    for i in range(9):
        k.e('buffer_load_ushort v%d, v4, s[12:15], 0 offen offset:%d' % (5 + i, 128 * i))
    for i in range(9):
        k.e('s_mov_b32 s24, %d' % (i * 64 * 6912),
            'buffer_load_dwordx4 %s, v3, s[16:19], s24 offen' % vr(16 + 4 * i))
    for j in range(8): k.e('v_mov_b32 v%d, 0' % (52 + j))
    k.e('s_waitcnt vmcnt(9)')
    for i in range(9):
        c = 5 + i
        k.e('v_lshlrev_b32 v%d, 16, v%d' % (c, c), 'v_mul_f32 v14, 0xbfb8aa3b, v%d' % c, 'v_exp_f32 v14, v14',
            's_nop 0', 'v_add_f32 v14, 1.0, v14', 'v_rcp_f32 v14, v14', 's_nop 0', 'v_mul_f32 v14, v14, v%d' % c,
            'v_cvt_pk_bf16_f32 v14, v14, v14', 'v_lshlrev_b32 v%d, 16, v14' % c)
    for i in range(9):
        k.e('s_waitcnt vmcnt(%d)' % (8 - i))
        for q in range(4):
            k.e('v_lshlrev_b32 v14, 16, v%d' % (16 + 4 * i + q), 'v_and_b32 v15, 0xffff0000, v%d' % (16 + 4 * i + q),
                'v_fmac_f32 v%d, v14, v%d' % (52 + 2 * q, 5 + i), 'v_fmac_f32 v%d, v15, v%d' % (53 + 2 * q, 5 + i))
    k.e('v_lshlrev_b32 v1, 5, v0', 'ds_write_b128 v1, v[52:55]', 'ds_write_b128 v1, v[56:59] offset:16',
        's_waitcnt lgkmcnt(0)', 's_barrier')
    k.e('v_and_b32 v2, 31, v0', 'v_lshrrev_b32 v3, 5, v0', 'v_lshrrev_b32 v4, 3, v2', 'v_and_b32 v5, 7, v2',
        'v_lshlrev_b32 v4, 5, v4', 'v_lshl_add_u32 v4, v5, 2, v4', 'v_lshl_add_u32 v4, v3, 10, v4')
    for i in range(8): k.e('ds_read_b32 v%d, v4 offset:%d' % (16 + i, 128 * i))
    k.e('s_waitcnt lgkmcnt(0)')
    for i in range(1, 8): k.e('v_add_f32 v16, v16, v%d' % (16 + i))
    k.e('v_lshlrev_b32 v6, 2, v0', 'ds_write_b32 v6, v16 offset:8192', 's_waitcnt lgkmcnt(0)', 's_barrier',
        'v_lshlrev_b32 v6, 2, v2')
    for i in range(8): k.e('ds_read_b32 v%d, v6 offset:%d' % (16 + i, 8192 + 128 * i))
    k.e('s_waitcnt lgkmcnt(0)')
    for i in range(1, 8): k.e('v_add_f32 v16, v16, v%d' % (16 + i))
    k.e('v_cvt_pk_bf16_f32 v16, v16, v16', 'v_lshlrev_b32 v16, 16, v16', 's_lshl_b32 s3, s2, 7',
        'v_add_u32 v6, s3, v6', 'v_cmp_gt_u32 vcc, 32, v0', 's_and_saveexec_b64 s[26:27], vcc',
        's_cbranch_execz k0_mod_kernel_end', 'buffer_store_dword v16, v6, s[20:23], 0 offen', 's_waitcnt vmcnt(0)')
    return k

def row_reduce(k, v, slotoff, t):
    k.e('s_nop 1', 'v_add_f32_dpp v%d, v%d, v%d row_ror:8 row_mask:0xf bank_mask:0xf' % (v, v, v),
        'ds_swizzle_b32 v%d, v%d offset:0x401F' % (t, v), 's_waitcnt lgkmcnt(0)',
        'v_add_f32 v%d, v%d, v%d' % (v, v, t), 'v_mov_b32 v%d, v%d' % (t, v), 's_nop 1',
        'v_permlane32_swap_b32 v%d, v%d' % (v, t), 's_nop 1', 'v_add_f32 v%d, v%d, v%d' % (v, v, t),
        'ds_write_b32 v10, v%d offset:%d' % (v, slotoff), 's_waitcnt lgkmcnt(0)', 's_barrier')
    for i in range(9): k.e('ds_read_b32 v%d, v11 offset:%d' % (t + i, slotoff + 32 * i))
    k.e('s_waitcnt lgkmcnt(0)')
    for i in range(1, 9): k.e('v_add_f32 v%d, v%d, v%d' % (t, t, t + i))
    k.e('v_mov_b32 v%d, v%d' % (v, t))

def row_kernel(name, mode, nsplit=5):
    k = K(name, 128)
    k.guard(256)
    k.ptr(4, 'x'); k.ptr(6, 'ws'); k.ptr(8, 'out')
    k.e('v_and_b32 v1, 63, v0', 'v_lshrrev_b32 v2, 6, v0',
        'v_and_b32 v3, 7, v1', 'v_bfe_u32 v4, v1, 3, 1', 'v_bfe_u32 v5, v1, 4, 1', 'v_lshrrev_b32 v6, 5, v1',
        'v_lshl_add_u32 v6, v2, 1, v6',
        's_lshr_b32 s10, s2, 2', 's_and_b32 s11, s2, 3', 's_lshl_b32 s11, s11, 3',
        'v_lshlrev_b32 v7, 5, v6', 'v_lshl_add_u32 v7, v5, 4, v7', 'v_lshl_add_u32 v7, v4, 3, v7',
        's_lshl_b32 s3, s2, 3', 'v_add_u32 v8, s3, v3', 'v_mul_u32_u24 v8, 1152, v8',
        'v_lshl_add_u32 v8, v7, 1, v8',
        'v_lshlrev_b32 v9, 5, v4', 'v_add_u32 v9, s11, v9', 'v_add_u32 v9, v9, v3',
        'v_lshlrev_b32 v10, 5, v2', 'v_lshl_add_u32 v10, v3, 2, v10', 'v_lshlrev_b32 v11, 2, v3',
        'v_lshlrev_b32 v12, 2, v7',
        's_mul_i32 s12, s10, 18', 'v_add_u32 v13, s12, v6', 'v_lshlrev_b32 v13, 2, v13',
        'v_lshl_add_u32 v13, v5, 1, v13', 'v_lshlrev_b32 v13, 10, v13', 'v_lshl_add_u32 v13, v9, 4, v13',
        's_mul_i32 s12, s10, 36', 'v_lshl_add_u32 v14, v6, 1, v5', 'v_add_u32 v14, s12, v14',
        'v_lshlrev_b32 v14, 10, v14', 'v_lshl_add_u32 v14, v9, 4, v14',
        's_waitcnt lgkmcnt(0)')
    k.srd(16, 6, WS_MOD, 3456 * 4)
    k.srd(20, 6, WS_PART, nsplit * PART_SZ)
    k.srd(24, 6, WS_X1, 2048 * 1152)
    if mode == 'final':
        k.srd(28, 8, 0, 2048 * 1152)
    else:
        k.srd(28, 6, WS_HF if mode == 'ln1' else WS_H2F, 2048 * 1152)
    k.srd(32, 4, 0, 2048 * 1152)
    xs = 's[24:27]' if mode == 'final' else 's[32:35]'
    k.e('buffer_load_dwordx4 v[16:19], v8, %s, 0 offen' % xs)
    def ldmod(dst, idx):
        k.e('s_mov_b32 s36, %d' % (idx * 2304),
            'buffer_load_dwordx4 %s, v12, s[16:19], s36 offen' % vr(dst),
            'buffer_load_dwordx4 %s, v12, s[16:19], s36 offen offset:16' % vr(dst + 4))
    if mode != 'ln1':
        ldmod(20, 2 if mode == 'mid' else 5)
        for sp in range(nsplit):
            k.e('s_mov_b32 s37, %d' % (sp * PART_SZ),
                'buffer_load_dwordx4 %s, v13, s[20:23], s37 offen' % vr(48 + 8 * sp),
                'buffer_load_dwordx4 %s, v13, s[20:23], s37 offen offset:1024' % vr(52 + 8 * sp))
    if mode != 'final':
        ldmod(28, 0 if mode == 'ln1' else 3); ldmod(36, 1 if mode == 'ln1' else 4)
    k.e('s_waitcnt vmcnt(0)')
    unpack8(k, 96, 16)
    if mode != 'ln1':
        for sp in range(1, nsplit):
            for j in range(8): k.e('v_add_f32 v%d, v%d, v%d' % (48 + j, 48 + j, 48 + 8 * sp + j))
        round8(k, 48, 104)
        for j in range(8): k.e('v_mul_f32 v%d, v%d, v%d' % (48 + j, 48 + j, 20 + j))
        round8(k, 48, 104)
        for j in range(8): k.e('v_add_f32 v%d, v%d, v%d' % (96 + j, 96 + j, 48 + j))
        round8(k, 96, 104)
        if mode == 'final':
            k.e('buffer_store_dwordx4 v[104:107], v8, s[28:31], 0 offen', 's_waitcnt vmcnt(0)')
            return k
        k.e('buffer_store_dwordx4 v[104:107], v8, s[24:27], 0 offen')
    k.e('v_add_f32 v108, v96, v97')
    for j in range(2, 8): k.e('v_add_f32 v108, v108, v%d' % (96 + j))
    row_reduce(k, 108, 0, 112)
    k.e('v_mul_f32 v108, 0x3ae38e39, v108')
    for j in range(8): k.e('v_sub_f32 v%d, v%d, v108' % (96 + j, 96 + j))
    k.e('v_mul_f32 v109, v96, v96')
    for j in range(1, 8): k.e('v_fmac_f32 v109, v%d, v%d' % (96 + j, 96 + j))
    row_reduce(k, 109, 512, 112)
    k.e('v_mov_b32 v110, 0x3727c5ac', 'v_fmac_f32 v110, 0x3ae38e39, v109', 'v_rsq_f32 v110, v110', 's_nop 0')
    for j in range(8):
        k.e('v_add_f32 v%d, 1.0, v%d' % (36 + j, 36 + j))
    round8(k, 36, 112)
    for j in range(8):
        k.e('v_mul_f32 v%d, v%d, v110' % (96 + j, 96 + j), 'v_fma_f32 v%d, v%d, v%d, v%d' % (96 + j, 96 + j, 36 + j, 28 + j))
    for i in range(4): k.e('v_cvt_pk_bf16_f32 v%d, v%d, v%d' % (112 + i, 96 + 2 * i, 97 + 2 * i))
    k.e('buffer_store_dwordx4 v[112:115], v14, s[28:31], 0 offen', 's_waitcnt vmcnt(0)')
    return k
```

```python
from base import *

def mfma(k, d, a, b, c):
    k.e('v_mfma_f32_32x32x16_bf16 %s, %s, %s, %s' % (d, a, b, c))

def gemm_stream(k, NB, nst, kps, aread, dma, bload, breg, acc, aring, D, pre_dma=2, bdist=0, pre_done=False):
    nks = nst * kps
    nf = nks * NB
    NR = D + 1
    for st in range(0 if pre_done else pre_dma):
        for f in dma(st): f()
    for ks in range(min(bdist, nks)): bload(ks)
    pend = []
    def read(f):
        ks, nb = divmod(f, NB)
        st, kk = divmod(ks, kps)
        if nb == 0 and kk == 0:
            k.wait_vm(('W', st))
            k.e('s_barrier')
            if st + pre_dma < nst: pend.extend(dma(st + pre_dma))
        r = aring + 4 * (f % NR)
        for jj in range(2):
            va, imm = aread(nb, kk, jj, st % 4)
            k.e('ds_read_b64_tr_b16 %s, v%d offset:%d' % (vr(r + 2 * jj, 2), va, imm))
    for f in range(min(D, nf)): read(f)
    for f in range(nf):
        ks, nb = divmod(f, NB)
        if f + D < nf: read(f + D)
        if pend: pend.pop(0)()
        if nb == 0 and bdist:
            k.wait_vm(('B', ks))
        left = min(D, nf - 1 - f)
        k.e('s_waitcnt lgkmcnt(%d)' % (2 * left))
        mfma(k, acc(nb), vr(aring + 4 * (f % NR)), breg(ks), acc(nb) if ks else '0')
        if nb == NB - 1 and bdist and ks + bdist < nks: bload(ks + bdist)
    assert not pend

def lane_dec(k):
    k.e('v_and_b32 v1, 63, v0', 'v_lshrrev_b32 v6, 6, v0', 's_nop 0', 'v_readfirstlane_b32 s40, v6',
        'v_lshrrev_b32 v2, 5, v1', 'v_bfe_u32 v3, v1, 2, 2', 'v_bfe_u32 v4, v1, 4, 1',
        'v_and_b32 v5, 1, v1', 'v_lshlrev_b32 v5, 4, v5', 'v_bfe_u32 v6, v1, 1, 1', 'v_lshl_add_u32 v5, v6, 3, v5')

def divmod_v(k, q, r, x, d):
    magic, sh = {12: (43691, 19), 18: (58255, 20)}[d]
    k.e('v_mul_u32_u24 v%d, %d, v%d' % (q, magic, x), 'v_lshrrev_b32 v%d, %d, v%d' % (q, sh, q),
        'v_mul_u32_u24 v%d, %d, v%d' % (r, d, q), 'v_sub_u32 v%d, v%d, v%d' % (r, x, r))

def splitk_kernel(name, warg, wsoff, nks_row, nst):
    k = K(name, 128)
    k.guard(240)
    k.ptr(4, warg); k.ptr(6, 'ws')
    lane_dec(k)
    k.e('s_and_b32 s10, s2, 7', 's_lshr_b32 s11, s2, 3', 's_mul_hi_u32 s12, s11, 0x2aaaaaab',
        's_mul_i32 s13, s12, 6', 's_sub_u32 s11, s11, s13',
        's_lshl_b32 s14, s10, 3', 's_add_u32 s14, s14, s40',
        's_mul_i32 s15, s11, 192', 's_and_b32 s16, s40, 3', 's_add_u32 s16, s16, 8')
    for ii, t in ((0, 's40'), (1, 's16')):
        k.e('s_lshl_b32 s17, %s, 6' % t, 'v_add_u32 v7, s17, v1')
        divmod_v(k, 8, 9, 7, 12)
        k.e('v_mul_u32_u24 v8, 1152, v8', 'v_lshl_add_u32 v8, v9, 4, v8', 'v_add_u32 v%d, s15, v8' % (10 + ii),
            's_lshl_b32 s%d, %s, 10' % (44 + ii, t))
    k.e('v_lshl_add_u32 v7, v2, 3, v3', 'v_mul_u32_u24 v7, 192, v7', 'v_lshl_add_u32 v7, v4, 5, v7',
        'v_add_u32 v12, v7, v5',
        's_mul_i32 s17, s14, %d' % (nks_row * 1024), 'v_lshlrev_b32 v13, 4, v1', 'v_add_u32 v13, s17, v13',
        's_mul_i32 s18, s12, %d' % (nst * 4096),
        's_mul_i32 s19, s12, %d' % (nst * 64 * 1152),
        's_waitcnt lgkmcnt(0)')
    k.srd(20, 4, 0, nks_row * 16 * 1152)
    k.srd(24, 6, wsoff, 64 * nks_row * 1024)
    k.srd(28, 6, WS_PART, 5 * PART_SZ)
    def dma(st):
        def mk(ii):
            def f():
                k.e('s_add_u32 m0, s%d, %d' % (44 + ii, (st % 4) * 12288))
                if ii == 0: k.e('s_add_u32 s33, s19, %d' % (st * 64 * 1152))
                else: k.e('s_nop 0')
                k.vmem('buffer_load_dwordx4 v%d, s[20:23], s33 offen lds' % (10 + ii), ('W', st))
            return f
        return [mk(0), mk(1)]
    BD = 8
    def bload(ks):
        if ks % 4 == 0: k.e('s_add_u32 s34, s18, %d' % (ks * 1024))
        k.vmem('buffer_load_dwordx4 %s, v13, s[24:27], s34 offen offset:%d' % (vr(64 + 4 * (ks % BD)), (ks % 4) * 1024), ('B', ks))
    gemm_stream(k, 3, nst, 4, lambda nb, kk, jj, sl: (12, sl * 12288 + (16 * kk + 4 * jj) * 192 + 64 * nb),
                dma, bload, lambda ks: vr(64 + 4 * (ks % BD)), lambda nb: vr(16 + 16 * nb, 16), 96, 5, bdist=BD)
    k.e('s_mul_i32 s17, s14, 18', 's_mul_i32 s13, s11, 3', 's_add_u32 s17, s17, s13', 's_lshl_b32 s17, s17, 12',
        's_mul_i32 s13, s12, %d' % PART_SZ, 's_add_u32 s17, s17, s13', 'v_lshlrev_b32 v13, 4, v1', 's_nop 15')
    for nb in range(3):
        k.e('s_add_u32 s13, s17, %d' % (nb * 4096))
        for q in range(4):
            k.e('buffer_store_dwordx4 %s, v13, s[28:31], s13 offen offset:%d' % (vr(16 + 16 * nb + 4 * q), q * 1024))
    k.e('s_waitcnt vmcnt(0)')
    return k

def gateup_kernel(name):
    k = K(name, 256)
    k.guard(256)
    k.ptr(4, 'wg'); k.ptr(6, 'wu'); k.ptr(8, 'ws')
    lane_dec(k)
    k.e('s_and_b32 s10, s2, 7', 's_bfe_u32 s11, s2, 0x20003', 's_lshl_b32 s11, s11, 3', 's_add_u32 s11, s11, s10',
        's_lshr_b32 s12, s2, 5', 's_lshl_b32 s14, s12, 3', 's_add_u32 s14, s14, s40',
        's_mul_i32 s15, s11, 288')
    for ii in range(5):
        if ii < 4: k.e('s_add_u32 s16, s40, %d' % (8 * ii))
        else: k.e('s_and_b32 s16, s40, 3', 's_add_u32 s16, s16, 32')
        k.e('s_cmp_ge_u32 s16, 18', 's_cselect_b32 s17, 18, 0', 's_cselect_b32 s18, 18560, 0',
            's_sub_u32 s16, s16, s17', 's_lshl_b32 s17, s16, 10', 's_add_u32 s%d, s17, s18' % (44 + ii),
            's_lshl_b32 s17, s16, 6', 'v_add_u32 v7, s17, v1')
        divmod_v(k, 8, 9, 7, 18)
        k.e('v_mul_u32_u24 v8, 9216, v8', 'v_lshl_add_u32 v8, v9, 4, v8', 'v_add_u32 v%d, s15, v8' % (10 + ii))
    k.e('v_lshl_add_u32 v7, v2, 3, v3', 'v_mul_u32_u24 v7, 288, v7', 'v_mul_u32_u24 v8, 18560, v4',
        'v_add3_u32 v15, v7, v8, v5', 'v_add_u32 v9, 74240, v15',
        's_mul_i32 s17, s14, %d' % (36 * 1024), 'v_lshlrev_b32 v6, 4, v1', 'v_add_u32 v6, s17, v6',
        's_waitcnt lgkmcnt(0)')
    k.srd(20, 4, 0, 576 * 9216); k.srd(24, 6, 0, 576 * 9216)
    k.srd(28, 8, WS_H2F, 2048 * 1152); k.srd(36, 8, WS_ACT, 2048 * 9216)
    k.e('s_cmp_lt_u32 s40, 2')
    for i in range(4): k.e('s_cselect_b32 s%d, s%d, s%d' % (52 + i, 20 + i, 24 + i))
    srds = ['s[20:23]', 's[20:23]', 's[52:55]', 's[24:27]', 's[24:27]']
    def dma(st):
        def mk(ii):
            def f():
                k.e('s_add_u32 m0, s%d, %d' % (44 + ii, (st % 4) * 37120))
                if ii == 0: k.e('s_mov_b32 s33, %d' % (st * 64 * 9216))
                else: k.e('s_nop 0')
                k.vmem('buffer_load_dwordx4 v%d, %s, s33 offen lds' % (10 + ii, srds[ii]), ('W', st))
            return f
        return [mk(i) for i in range(5)]
    BD = 4
    def bload(ks):
        if ks % 4 == 0: k.e('s_mov_b32 s34, %d' % (ks * 1024))
        k.vmem('buffer_load_dwordx4 %s, v6, s[28:31], s34 offen offset:%d' % (vr(160 + 4 * (ks % BD)), (ks % 4) * 1024), ('B', ks))
    def aread(b, kk, jj, sl):
        return (15 if sl < 2 else 9, (sl % 2) * 37120 + (16 * kk + 4 * jj) * 288 + 32 * b)
    gemm_stream(k, 9, 9, 4, aread, dma, bload, lambda ks: vr(160 + 4 * (ks % BD)),
                lambda nb: vr(16 + 16 * nb, 16), 176, 5, bdist=BD)
    k.e('s_mul_i32 s17, s14, 288', 's_mul_i32 s13, s11, 9', 's_add_u32 s17, s17, s13', 's_lshl_b32 s17, s17, 10',
        'v_lshlrev_b32 v13, 4, v1', 's_nop 15')
    for b in range(9):
        g, u, t = 16 + 16 * b, 24 + 16 * b, 208 + 16 * (b % 2)
        for j in range(8): k.e('v_mul_f32 v%d, 0xbfb8aa3b, v%d' % (t + j, g + j))
        for j in range(8): k.e('v_exp_f32 v%d, v%d' % (t + j, t + j))
        for j in range(0, 8, 2): k.e('v_pk_mul_f32 %s, %s, %s' % (vr(g + j, 2), vr(g + j, 2), vr(u + j, 2)))
        for j in range(8): k.e('v_add_f32 v%d, 1.0, v%d' % (t + j, t + j))
        for j in range(8): k.e('v_rcp_f32 v%d, v%d' % (t + j, t + j))
        k.e('s_nop 0')
        for j in range(0, 8, 2): k.e('v_pk_mul_f32 %s, %s, %s' % (vr(g + j, 2), vr(g + j, 2), vr(t + j, 2)))
        for i in range(4): k.e('v_cvt_pk_bf16_f32 v%d, v%d, v%d' % (t + 8 + i, g + 2 * i, g + 2 * i + 1))
        k.e('s_add_u32 s13, s17, %d' % (b * 1024),
            'buffer_store_dwordx4 %s, v13, s[36:39], s13 offen' % vr(t + 8))
    k.e('s_waitcnt vmcnt(0)')
    return k
```

```python
import sys, importlib
from base import *
import gemm, attn
def build(only=None):
    ks = [(gemv_kernel(), 108, 256, 8192 + 1024),
          (row_kernel('k1_ln_kernel', 'ln1'), 256, 576, 1024),
          (attn.attn_kernel('k2_attn_kernel'), 256, 256, 131072),
          (gemm.splitk_kernel('k3_oproj_kernel', 'wo', WS_OF, 256, 13), 240, 512, 49152),
          (row_kernel('k4_mid_kernel', 'mid'), 256, 576, 1024),
          (gemm.gateup_kernel('k5_gateup_kernel'), 256, 512, 148480),
          (gemm.splitk_kernel('k6_down_kernel', 'wd', WS_ACT, 288, 15), 240, 512, 49152),
          (row_kernel('k7_final_kernel', 'final'), 256, 576, 1024)]
    hdr = open('adaLN_cond__gqa_block_cached__swiglu_ffn__prompt.s.ref').read().split('; Override')[0]
    o = hdr
    for k, g, b, l in ks:
        o += '; @launch kernel=%s grid=(%d,1,1) block=(%d,1,1) lds=%d\n' % (k.name, g, b, l)
    o += '.amdgcn_target "amdgcn-amd-amdhsa--gfx950"\n'
    for k, g, b, l in ks: o += k.text()
    return o
if __name__ == '__main__':
    out = sys.argv[1] if len(sys.argv) > 1 else 'adaLN_cond__gqa_block_cached__swiglu_ffn__prompt.s'
    open(out, 'w').write(build())
```

```python
from base import *
import os, sys
OPT = set(os.environ.get('OPT', '').split(','))
from gemm import mfma, gemm_stream, lane_dec

S = lambda par, hd: par * 32 + hd * 16
P = lambda par, hd, ks: 64 + par * 16 + hd * 8 + ks * 4
NEGM = lambda hd: 96 + hd * 16
ET, LS, PS, TMP = 128, 136, 138, 140
KA, VA, KD0, KD1, VD = 144, 152, 156, 157, 158
O = lambda hd, db: hd * 64 + db * 16
Q = lambda hd, s: 128 + (hd * 8 + s) * 4
KF = lambda s: 192 + 4 * s
VF = lambda ks, db: 224 + 4 * (ks * 4 + db)
KBASE, VBASE, WBASE = 0, 32768, 65536
QSCALE = 0x3e0293ee
THRESH = 0x67800000

def softmax_ops(par):
    ops = []
    seq = [(hd, j) for hd in range(2) for j in range(16)]
    et = lambda i: ET + i % 8
    for i in range(len(seq) + 1):
        g = []
        if i < len(seq):
            hd, j = seq[i]
            g.append('v_exp_f32 v%d, v%d' % (et(i), S(par, hd) + j))
        if i >= 1:
            hd, j = seq[i - 1]
            if j == 1: g.append('v_add_f32 v%d, v%d, v%d' % (PS + hd, et(i - 2), et(i - 1)))
            elif j > 1: g.append('v_add_f32 v%d, v%d, v%d' % (PS + hd, PS + hd, et(i - 1)))
            if j % 2 == 1:
                g.append('v_cvt_pk_bf16_f32 v%d, v%d, v%d' % (P(par, hd, j // 8) + (j % 8) // 2, et(i - 2), et(i - 1)))
        if 'noexp' in OPT: g = [x for x in g if 'v_exp' not in x]
        if 'noadd' in OPT: g = [x for x in g if 'v_add' not in x]
        if 'nocvt' in OPT: g = [x for x in g if 'v_cvt' not in x]
        if 'exp2mov' in OPT: g = [x.replace('v_exp_f32', 'v_mov_b32') for x in g]
        ops.append(g)
    return ops

def kread(s, slot): return 'ds_read_b128 %s, v%d offset:%d' % (ar(KF(s)), KA + s, slot * 8192)
def vread(ks, db, jj, slot):
    return 'ds_read_b64_tr_b16 %s, v%d offset:%d' % (ar(VF(ks, db) + 2 * jj, 2), VA + db, slot * 8192 + (16 * ks + 8 * jj) * 256)

def dma_k(k, slot):
    return [['s_add_u32 m0, s41, %d' % (KBASE + slot * 8192), 's_nop 0',
             'buffer_load_dwordx4 v%d, s[20:23], s42 offen lds' % KD0],
            ['buffer_load_dwordx4 v%d, s[20:23], s42 offen offset:2048 lds' % KD1]]
def dma_v(k, slot):
    return [['s_add_u32 m0, s41, %d' % (VBASE + slot * 8192), 's_nop 0',
             'buffer_load_dwordx4 v%d, s[24:27], s43 offen lds' % VD],
            ['buffer_load_dwordx4 v%d, s[24:27], s43 offen offset:2048 lds' % VD]]

def qk_mfmas(par):
    return [('v_mfma_f32_32x32x16_bf16 %s, %s, %s, %s' % (vr(S(par, hd), 16), ar(KF(s)), ar(Q(hd, s)),
             vr(NEGM(hd), 16) if s == 0 else vr(S(par, hd), 16))) for s in range(8) for hd in range(2)]
def pv_mfmas(par):
    return [('v_mfma_f32_32x32x16_bf16 %s, %s, %s, %s' % (ar(O(hd, db), 16), ar(VF(ks, db)), vr(P(par, hd, ks)), ar(O(hd, db), 16)))
            for ks in range(2) for db in range(4) for hd in range(2)]

def rescale(k, par, init):
    k.e('s_nop 15', 's_nop 7')
    for hd in range(2):
        s, d = S(par, hd), TMP
        k.e('v_max3_f32 v%d, v%d, v%d, v%d' % (d, s, s + 1, s + 2))
        for j in range(3, 15, 2): k.e('v_max3_f32 v%d, v%d, v%d, v%d' % (d, d, s + j, s + j + 1))
        k.e('v_max_f32 v%d, v%d, v%d' % (d, d, s + 15), 'v_mov_b32 v%d, v%d' % (d + 1, d), 's_nop 1',
            'v_permlane32_swap_b32 v%d, v%d' % (d, d + 1), 's_nop 1', 'v_max_f32 v%d, v%d, v%d' % (d, d, d + 1))
        if not init: k.e('v_max_f32 v%d, 0, v%d' % (d, d))
        for j in range(16):
            k.e('v_sub_f32 v%d, v%d, v%d' % (s + j, s + j, d),
                'v_sub_f32 v%d, v%d, v%d' % (S(par ^ 1, hd) + j, S(par ^ 1, hd) + j, d),
                'v_sub_f32 v%d, v%d, v%d' % (NEGM(hd) + j, NEGM(hd) + j, d))
        if not init:
            k.e('v_sub_f32 v%d, 0, v%d' % (d + 1, d), 'v_exp_f32 v%d, v%d' % (d + 1, d + 1), 's_nop 0',
                'v_mul_f32 v%d, v%d, v%d' % (LS + hd, LS + hd, d + 1))
            for r in range(0, 64, 4):
                for j in range(4): k.e('v_accvgpr_read_b32 v%d, a%d' % (ET + j, hd * 64 + r + j))
                for j in range(4): k.e('v_mul_f32 v%d, v%d, v%d' % (ET + j, ET + j, d + 1))
                for j in range(4): k.e('v_accvgpr_write_b32 a%d, v%d' % (hd * 64 + r + j, ET + j))
    for g in softmax_ops(par):
        k.e(*g)
        k.e('s_nop 0')
    k.e('s_nop 1')

def sm_stream(par):
    seq = [(hd, j) for hd in range(2) for j in range(16)]
    et = lambda i: ET + i % 8
    out = []
    for i in range(len(seq) + 1):
        if i < len(seq):
            hd, j = seq[i]
            out.append((8, 'v_exp_f32 v%d, v%d' % (et(i), S(par, hd) + j)))
        if i >= 1:
            hd, j = seq[i - 1]
            if j == 1: out.append((4, 'v_add_f32 v%d, v%d, v%d' % (PS + hd, et(i - 2), et(i - 1))))
            elif j > 1: out.append((4, 'v_add_f32 v%d, v%d, v%d' % (PS + hd, PS + hd, et(i - 1))))
            if j % 2 == 1:
                out.append((4, 'v_cvt_pk_bf16_f32 v%d, v%d, v%d' % (P(par, hd, j // 8) + (j % 8) // 2, et(i - 2), et(i - 1))))
    out.insert(len(out) - 2, (4, 's_nop 0'))
    out += [(4, 'v_max_f32 v%d, v%d, v%d' % (TMP, PS, PS + 1)), (4, 'v_cmp_nge_f32 vcc, s44, v%d' % TMP)]
    return out

PARAM = dict(x.split('=') for x in os.environ.get('PARAM', '').split(',') if x)
CAP = int(PARAM.get('cap', 24)); DC = int(PARAM.get('dc', 16))
DPOS = [int(x) for x in PARAM.get('dpos', '12.14.26.28').split('.')]

def window(k, w4, do_qk=True, do_sm=True, kdma=True, vdma=True, kpre=True, tag='', prev_sm=True):
    par = w4 & 1
    k.e('s_waitcnt vmcnt(%d) lgkmcnt(0)' % WAITN[0], 's_barrier')
    WAITN[0] = 2 * (kdma + vdma)
    qk = qk_mfmas(par) if do_qk else []
    pv = pv_mfmas(par)
    mf = qk + pv
    n = len(mf)
    fill = [[] for _ in mf]
    used = [0] * n
    def put(g, items, cost):
        fill[g] += items; used[g] += cost
    if prev_sm:
        put(0, ['v_add_f32 v%d, v%d, v%d' % (LS, LS, PS), 'v_add_f32 v%d, v%d, v%d' % (LS + 1, LS + 1, PS + 1)], 8)
    vrd = [vread(ks, db, jj, w4) for ks in range(2) for db in range(4) for jj in range(2)]
    pre = []
    lds = 'nolds' not in OPT
    if do_qk:
        for i, r in enumerate(vrd):
            if lds: put((i * 3) // 4, [r], 4)
    else: pre = vrd
    npv0 = len(qk)
    if kpre and lds:
        for s in range(8): put(npv0 + s + (1 if s < 4 else 2), [kread(s, (w4 + 3) % 4)], 4)
    dm = (dma_k(k, (w4 + 1) % 4) if kdma else []) + (dma_v(k, (w4 + 2) % 4) if vdma else [])
    pos = DPOS if do_qk else [10, 11, 12, 13]
    if 'nodma' in OPT: dm = []
    for i, d in enumerate(dm): put(pos[i], d, DC + (4 if len(d) > 1 else 0))
    if dm: put(pos[len(dm) - 1] + 1, ['s_add_u32 s42, s42, 8192', 's_add_u32 s43, s43, 8192'], 4)
    if do_sm and 'nosm' not in OPT:
        st = sm_stream(par ^ 1)
        cap = CAP if n == 32 else 1000 // n
        g = 0
        while st:
            c, t = st[0]
            if used[g] + c > cap and g < n - 1:
                g += 1; continue
            st.pop(0); fill[g].insert(len([x for x in fill[g] if x.startswith('v_')]), t); used[g] += c
        if tag == 'L' and w4 == 0: print('gap load', used, file=sys.stderr)
    k.e(*pre)
    for i, m in enumerate(mf):
        if i == npv0: k.e('s_waitcnt lgkmcnt(0)')
        k.e(m)
        k.e(*fill[i])
    if do_sm:
        lab = 'att_%s%d' % (tag, w4)
        k.e('s_cbranch_vccnz %s_slow' % lab, '%s_back:' % lab)
        STUBS.append((lab, par ^ 1))

WAITN = [0]
STUBS = []

def attn_kernel(name):
    k = K(name, 256, 256)
    k.guard(256)
    k.ptr(4, 'k'); k.ptr(6, 'v'); k.ptr(8, 'wq'); k.ptr(10, 'ws')
    def stamp(i):
        if 'time' in OPT: k.e('s_memtime s[%d:%d]' % (60 + 2 * i, 61 + 2 * i))
    stamp(0)
    lane_dec(k)
    k.e('s_and_b32 s12, s2, 7', 's_lshl_b32 s12, s12, 1', 's_bfe_u32 s13, s2, 0x10003', 's_add_u32 s12, s12, s13',
        's_lshr_b32 s13, s2, 4', 's_lshl_b32 s14, s13, 2', 's_add_u32 s14, s14, s40',
        's_lshl_b32 s15, s12, 19', 's_sub_u32 s16, %d, s15' % (16 << 19), 's_lshl_b32 s17, s12, 9',
        's_and_b32 s18, s40, 1', 's_lshr_b32 s19, s40, 1', 's_lshl_b32 s19, s19, 2', 's_add_u32 s18, s18, s19',
        's_lshl_b32 s41, s18, 10', 's_mov_b32 s44, 0x%x' % THRESH)
    k.e('v_and_b32 v6, 31, v1', 'v_and_b32 v7, 15, v1', 'v_xor_b32 v7, v7, v2', 'v_lshlrev_b32 v8, 8, v6')
    for s in range(8):
        k.e('v_xor_b32 v9, %d, v7' % (2 * s), 'v_lshl_add_u32 v%d, v9, 4, v8' % (KA + s))
    k.e('v_lshl_add_u32 v6, v2, 2, v3', 'v_lshlrev_b32 v6, 8, v6', 'v_lshl_add_u32 v6, v4, 5, v6', 'v_add_u32 v6, v6, v5',
        'v_add_u32 v6, %d, v6' % VBASE)
    for db in range(4):
        k.e('v_xor_b32 v9, %d, v3' % db, 'v_lshl_add_u32 v%d, v9, 6, v6' % (VA + db))
    k.e('v_lshrrev_b32 v6, 4, v1', 'v_and_b32 v7, 15, v1')
    for jx, reg in ((0, KD0), (1, KD1)):
        k.e('s_add_u32 s19, s18, %d' % (2 * jx), 's_lshl_b32 s19, s19, 2', 'v_add_u32 v8, s19, v6',
            'v_and_b32 v9, 15, v8', 'v_xor_b32 v9, v9, v7', 'v_lshlrev_b32 v9, 4, v9', 'v_lshl_add_u32 v%d, v8, 8, v9' % reg)
    k.e('v_subrev_u32 v%d, 2048, v%d' % (KD1, KD1))
    k.e('s_lshl_b32 s19, s18, 2', 'v_add_u32 v8, s19, v6', 'v_lshlrev_b32 v9, 2, v6', 'v_xor_b32 v9, v9, v7',
        'v_lshlrev_b32 v9, 4, v9', 'v_lshl_add_u32 v%d, v8, 8, v9' % VD)
    k.e('v_lshrrev_b32 v6, 5, v1', 's_lshl_b32 s19, s40, 1', 'v_add_u32 v6, s19, v6', 'v_and_b32 v7, 3, v6',
        'v_lshlrev_b32 v7, 2, v7', 'v_and_b32 v8, 31, v1', 'v_xor_b32 v7, v7, v8', 'v_lshlrev_b32 v7, 4, v7',
        'v_lshlrev_b32 v6, 13, v6', 'v_add3_u32 v159, v6, v7, s17', 's_lshl_b32 s45, s40, 10',
        'v_lshl_add_u32 v6, v2, 3, v3', 'v_lshlrev_b32 v6, 9, v6', 'v_lshl_add_u32 v6, v4, 5, v6', 'v_add_u32 v6, v6, v5',
        'v_add_u32 v6, %d, v6' % WBASE)
    for q in range(4):
        k.e('v_xor_b32 v9, %d, v3' % q, 'v_lshl_add_u32 v%d, v9, 6, v6' % (188 + q))
    k.e('s_mul_i32 s19, s14, %d' % (36 * 1024), 'v_lshlrev_b32 v160, 4, v1', 'v_add_u32 v160, s19, v160',
        'v_lshlrev_b32 v161, 4, v1', 's_waitcnt lgkmcnt(0)')
    k.srd(20, 4, 's15', 's16'); k.srd(24, 6, 's15', 's16')
    k.srd(28, 8, 0, 576 * 8192); k.srd(32, 10, WS_HF, 2048 * 1152); k.srd(36, 10, WS_OF, 2048 * 8192)
    def wdma(st):
        def mk(jx):
            def f():
                k.e('s_add_u32 m0, s45, %d' % (WBASE + (st % 4) * 16384 + jx * 4096),
                    's_mov_b32 s46, %d' % ((st * 32 + 8 * jx) * 8192))
                k.vmem('buffer_load_dwordx4 v159, s[28:31], s46 offen lds', ('W', st))
            return f
        return [mk(j) for j in range(4)]
    for f in wdma(0) + wdma(1): f()
    for ks in range(36):
        if ks % 4 == 0: k.e('s_mov_b32 s47, %d' % (ks * 1024))
        k.vmem('buffer_load_dwordx4 %s, v160, s[32:35], s47 offen offset:%d' % (vr(4 * ks), (ks % 4) * 1024), ('B', ks))
    for u in range(4):
        k.e('s_mov_b32 s42, %d' % (u * 8192))
        for g in dma_k(k, u):
            k.e(*g[:-1]); k.vmem(g[-1], 'KV')
    for u in range(2):
        k.e('s_mov_b32 s43, %d' % (u * 8192))
        for g in dma_v(k, u):
            k.e(*g[:-1]); k.vmem(g[-1], 'KV')
    seen = set()
    def breg(ks):
        if ks not in seen:
            seen.add(ks); k.wait_vm(('B', ks))
        return vr(4 * ks)
    gemm_stream(k, 8, 18, 2, lambda nb, kk, jj, sl: (188 + (nb & 3), sl * 16384 + (16 * kk + 4 * jj) * 512 + (nb >> 2) * 256),
                wdma, None, breg, lambda nb: ar(16 * nb, 16), 162, 5, pre_dma=2, bdist=0, pre_done=True)
    stamp(1)
    k.e('s_nop 15', 's_mov_b32 s46, 0x%x' % QSCALE)
    for hd in range(2):
        for s in range(8):
            src = 16 * (hd * 4 + s // 2) + 8 * (s % 2)
            for j in range(8): k.e('v_accvgpr_read_b32 v%d, a%d' % (j, src + j))
            for j in range(8): k.e('v_mul_f32 v%d, s46, v%d' % (j, j))
            for i in range(4): k.e('v_cvt_pk_bf16_f32 v%d, v%d, v%d' % (8 + i, 2 * i, 2 * i + 1))
            for i in range(4): k.e('v_accvgpr_write_b32 a%d, v%d' % (Q(hd, s) + i, 8 + i))
    for r in range(128): k.e('v_accvgpr_write_b32 a%d, 0' % r)
    for r in range(32): k.e('v_mov_b32 v%d, 0' % (NEGM(0) + r))
    k.e('v_mov_b32 v%d, 0' % LS, 'v_mov_b32 v%d, 0' % (LS + 1))
    k.wait_all()
    k.e('s_barrier')
    for u in range(2):
        for s in range(8): k.e(kread(s, u))
        k.e('s_waitcnt lgkmcnt(0)')
        k.e(*qk_mfmas(u))
        k.e('s_nop 7')
    k.e('s_barrier', 's_mov_b32 s42, %d' % (4 * 8192))
    for g in dma_k(k, 0): k.e(*g)
    for s in range(8): k.e(kread(s, 2))
    rescale(k, 0, True)
    k.e('s_mov_b32 s42, %d' % (5 * 8192), 's_mov_b32 s43, %d' % (2 * 8192), 's_mov_b32 s47, 14')
    stamp(2)
    k.e('.p2align 3', 'att_loop:')
    WAITN[0] = 4
    for w4 in range(4): window(k, w4, tag='L')
    k.e('s_sub_u32 s47, s47, 1', 's_cmp_lg_u32 s47, 0', 's_cbranch_scc1 att_loop')
    stamp(3)
    for w in range(56, 64):
        window(k, w % 4, do_qk=w <= 61, do_sm=w <= 62, kdma=w <= 58, vdma=w <= 61, kpre=w <= 60, tag='T%d_' % w)
    stamp(4)
    k.e('s_nop 15', 's_lshl_b32 s19, s14, 8', 's_lshl_b32 s13, s12, 4', 's_add_u32 s19, s19, s13', 's_lshl_b32 s19, s19, 10')
    for hd in range(2):
        k.e('v_mov_b32 v0, v%d' % (LS + hd), 'v_mov_b32 v1, v%d' % (LS + hd), 's_nop 1', 'v_permlane32_swap_b32 v0, v1',
            's_nop 1', 'v_add_f32 v0, v0, v1', 'v_rcp_f32 v0, v0', 's_nop 0')
        for db in range(4):
            for sp in range(2):
                t = 16 + 16 * ((db * 2 + sp) % 4)
                src = O(hd, db) + 8 * sp
                for j in range(8): k.e('v_accvgpr_read_b32 v%d, a%d' % (t + j, src + j))
                for j in range(8): k.e('v_mul_f32 v%d, v%d, v0' % (t + j, t + j))
                for i in range(4): k.e('v_cvt_pk_bf16_f32 v%d, v%d, v%d' % (t + 8 + i, t + 2 * i, t + 2 * i + 1))
                k.e('s_add_u32 s13, s19, %d' % ((hd * 8 + 2 * db + sp) * 1024),
                    'buffer_store_dwordx4 %s, v161, s[36:39], s13 offen' % vr(t + 8))
    k.e('s_waitcnt vmcnt(0)')
    if 'time' in OPT:
        stamp(5)
        k.e('s_load_dwordx2 s[4:5], s[0:1], 96', 's_waitcnt lgkmcnt(0)', 's_cmp_lg_u32 s2, 37', 's_cbranch_scc1 %s_end' % name)
        k.srd(8, 4, 0, 256)
        k.e('s_lshl_b32 s13, s40, 5', 'v_mov_b32 v0, s13')
        for i in range(5):
            k.e('s_sub_u32 s13, s%d, s%d' % (62 + 2 * i, 60 + 2 * i), 'v_mov_b32 v1, s13',
                'buffer_store_dword v1, v0, s[8:11], 0 offen offset:%d' % (4 * i))
        k.e('s_waitcnt vmcnt(0)')
    t = K('x', 0)
    for lab, par in STUBS:
        t.e('%s_slow:' % lab, 's_call_b64 s[48:49], att_sub%d' % par, 's_branch %s_back' % lab)
    for par in range(2):
        t.e('att_sub%d:' % par)
        rescale(t, par, False)
        t.e('s_setpc_b64 s[48:49]')
    k.tail = t.L
    return k
```

```python
WS_MOD, WS_HF, WS_H2F, WS_X1 = 0x0, 0x10000, 0x300000, 0x600000
WS_OF, WS_ACT, WS_PART = 0x1000000, 0x2000000, 0x4000000
PART_SZ = 2048 * 576 * 4
ARG = dict(x=0, k=8, v=16, wq=24, wo=32, wg=48, wu=56, wd=64, c=72, wmod=80, out=88, ws=104)
import os
OPT = set(os.environ.get('OPT', '').split(','))
PARAM = dict(x.split('=') for x in os.environ.get('PARAM', '').split(',') if x)
LOG2E = 0x3fb8aa3b
SW = [0, 2, 1, 3]

class K:
    def __init__(s, name, vgpr, agpr=0):
        s.name, s.L, s.vm, s.vgpr, s.agpr = name, [], [], vgpr, agpr
    def e(s, *lines):
        for l in lines: s.L.append(l if l.endswith(':') else '    ' + l)
    def vmem(s, line, tag=None):
        s.e(line); s.vm.append(tag)
    def wait_vm(s, tag, extra=''):
        idx = [i for i, t in enumerate(s.vm) if t == tag]
        if not idx:
            if extra: s.e('s_waitcnt ' + extra)
            return
        n = len(s.vm) - 1 - idx[-1]
        s.e('s_waitcnt vmcnt(%d) %s' % (min(n, 63), extra))
        s.vm = s.vm[idx[-1] + 1:]
    def wait_all(s):
        s.e('s_waitcnt vmcnt(0) lgkmcnt(0)'); s.vm = []
    def ptr(s, reg, arg):
        s.e('s_load_dwordx2 s[%d:%d], s[0:1], %d' % (reg, reg + 1, ARG[arg]))
    def srd(s, d, p, off, size):
        s.e('s_add_u32 s%d, s%d, %s' % (d, p, off), 's_addc_u32 s%d, s%d, 0' % (d + 1, p + 1),
            's_mov_b32 s%d, %s' % (d + 2, size), 's_mov_b32 s%d, 0x20000' % (d + 3))
    def guard(s, n):
        s.e('s_cmp_ge_u32 s2, %d' % n, 's_cbranch_scc1 %s_end' % s.name)
    def stamp(s, i):
        if 'time' in OPT: s.e('s_memtime s[%d:%d]' % (60 + 2 * i, 61 + 2 * i))
    def dump(s, n, wavereg='s40', wg=37):
        if 'time' not in OPT: return
        s.stamp(n)
        s.e('s_load_dwordx2 s[4:5], s[0:1], 96', 's_waitcnt lgkmcnt(0)', 's_cmp_lg_u32 s2, %d' % wg, 's_cbranch_scc1 %s_end' % s.name)
        s.srd(8, 4, 0, 256)
        s.e('s_lshl_b32 s13, %s, 5' % wavereg, 'v_mov_b32 v0, s13')
        for i in range(n):
            s.e('s_sub_u32 s13, s%d, s%d' % (62 + 2 * i, 60 + 2 * i), 'v_mov_b32 v1, s13',
                'buffer_store_dword v1, v0, s[8:11], 0 offen offset:%d' % (4 * i))
        s.e('s_waitcnt vmcnt(0)')
    def text(s):
        acc = (s.vgpr + 3) // 4 * 4
        tot = acc + s.agpr if s.agpr else s.vgpr
        h = ['.text', '.globl %s' % s.name, '.p2align 8', '.type %s,@function' % s.name, s.name + ':']
        t = ['%s_end:' % s.name, '    s_endpgm'] + getattr(s, 'tail', [])
        d = ['.section .rodata,"a"', '.p2align 6', '.amdhsa_kernel %s' % s.name,
             '  .amdhsa_next_free_vgpr %d' % tot, '  .amdhsa_next_free_sgpr 96',
             '  .amdhsa_accum_offset %d' % acc, '  .amdhsa_group_segment_fixed_size 0',
             '  .amdhsa_kernarg_size 112', '  .amdhsa_user_sgpr_count 2',
             '  .amdhsa_user_sgpr_kernarg_segment_ptr 1', '  .amdhsa_system_sgpr_workgroup_id_x 1',
             '.end_amdhsa_kernel']
        return '\n'.join(h + s.L + t + d) + '\n'

def vr(b, n=4): return 'v[%d:%d]' % (b, b + n - 1)
def ar(b, n=4): return 'a[%d:%d]' % (b, b + n - 1)

def unpack8(k, dst, src):
    for i in range(4):
        k.e('v_lshlrev_b32 v%d, 16, v%d' % (dst + 2 * i, src + i),
            'v_and_b32 v%d, 0xffff0000, v%d' % (dst + 2 * i + 1, src + i))

def round8(k, v, tmp):
    for i in range(4): k.e('v_cvt_pk_bf16_f32 v%d, v%d, v%d' % (tmp + i, v + 2 * i, v + 2 * i + 1))
    unpack8(k, v, tmp)

def gemv_kernel():
    k = K('k0_mod_kernel', 64)
    k.guard(108)
    k.ptr(4, 'c'); k.ptr(6, 'wmod'); k.ptr(8, 'ws')
    k.e('v_and_b32 v1, 3, v0', 'v_lshrrev_b32 v2, 2, v0', 's_lshl_b32 s3, s2, 6',
        'v_mul_u32_u24 v3, 6912, v2', 'v_lshl_add_u32 v3, v1, 4, v3', 'v_add_u32 v3, s3, v3',
        'v_lshlrev_b32 v4, 1, v2', 's_waitcnt lgkmcnt(0)')
    k.srd(12, 4, 0, 1152); k.srd(16, 6, 0, 576 * 6912); k.srd(20, 8, WS_MOD, 3456 * 4)
    for i in range(9):
        k.e('buffer_load_ushort v%d, v4, s[12:15], 0 offen offset:%d' % (5 + i, 128 * i))
    for i in range(9):
        k.e('s_mov_b32 s24, %d' % (i * 64 * 6912),
            'buffer_load_dwordx4 %s, v3, s[16:19], s24 offen' % vr(16 + 4 * i))
    for j in range(8): k.e('v_mov_b32 v%d, 0' % (52 + j))
    k.e('s_waitcnt vmcnt(9)')
    for i in range(9):
        c = 5 + i
        k.e('v_lshlrev_b32 v%d, 16, v%d' % (c, c), 'v_mul_f32 v14, 0xbfb8aa3b, v%d' % c, 'v_exp_f32 v14, v14',
            's_nop 0', 'v_add_f32 v14, 1.0, v14', 'v_rcp_f32 v14, v14', 's_nop 0', 'v_mul_f32 v14, v14, v%d' % c,
            'v_cvt_pk_bf16_f32 v14, v14, v14', 'v_lshlrev_b32 v%d, 16, v14' % c)
    for i in range(9):
        k.e('s_waitcnt vmcnt(%d)' % (8 - i))
        for q in range(4):
            k.e('v_lshlrev_b32 v14, 16, v%d' % (16 + 4 * i + q), 'v_and_b32 v15, 0xffff0000, v%d' % (16 + 4 * i + q),
                'v_fmac_f32 v%d, v14, v%d' % (52 + 2 * q, 5 + i), 'v_fmac_f32 v%d, v15, v%d' % (53 + 2 * q, 5 + i))
    k.e('v_lshlrev_b32 v1, 5, v0', 'ds_write_b128 v1, v[52:55]', 'ds_write_b128 v1, v[56:59] offset:16',
        's_waitcnt lgkmcnt(0)', 's_barrier')
    k.e('v_and_b32 v2, 31, v0', 'v_lshrrev_b32 v3, 5, v0', 'v_lshrrev_b32 v4, 3, v2', 'v_and_b32 v5, 7, v2',
        'v_lshlrev_b32 v4, 5, v4', 'v_lshl_add_u32 v4, v5, 2, v4', 'v_lshl_add_u32 v4, v3, 10, v4')
    for i in range(8): k.e('ds_read_b32 v%d, v4 offset:%d' % (16 + i, 128 * i))
    k.e('s_waitcnt lgkmcnt(0)')
    for i in range(1, 8): k.e('v_add_f32 v16, v16, v%d' % (16 + i))
    k.e('v_lshlrev_b32 v6, 2, v0', 'ds_write_b32 v6, v16 offset:8192', 's_waitcnt lgkmcnt(0)', 's_barrier',
        'v_lshlrev_b32 v6, 2, v2')
    for i in range(8): k.e('ds_read_b32 v%d, v6 offset:%d' % (16 + i, 8192 + 128 * i))
    k.e('s_waitcnt lgkmcnt(0)')
    for i in range(1, 8): k.e('v_add_f32 v16, v16, v%d' % (16 + i))
    k.e('v_cvt_pk_bf16_f32 v16, v16, v16', 'v_lshlrev_b32 v16, 16, v16', 's_lshl_b32 s3, s2, 7',
        'v_add_u32 v6, s3, v6', 'v_cmp_gt_u32 vcc, 32, v0', 's_and_saveexec_b64 s[26:27], vcc',
        's_cbranch_execz k0_mod_kernel_end', 'buffer_store_dword v16, v6, s[20:23], 0 offen', 's_waitcnt vmcnt(0)')
    return k

def row_reduce(k, v, slotoff, t):
    k.e('s_nop 1', 'v_add_f32_dpp v%d, v%d, v%d row_ror:8 row_mask:0xf bank_mask:0xf' % (v, v, v),
        'ds_swizzle_b32 v%d, v%d offset:0x401F' % (t, v), 's_waitcnt lgkmcnt(0)',
        'v_add_f32 v%d, v%d, v%d' % (v, v, t), 'v_mov_b32 v%d, v%d' % (t, v), 's_nop 1',
        'v_permlane32_swap_b32 v%d, v%d' % (v, t), 's_nop 1', 'v_add_f32 v%d, v%d, v%d' % (v, v, t),
        'ds_write_b32 v10, v%d offset:%d' % (v, slotoff), 's_waitcnt lgkmcnt(0)', 's_barrier')
    for i in range(9): k.e('ds_read_b32 v%d, v11 offset:%d' % (t + i, slotoff + 32 * i))
    k.e('s_waitcnt lgkmcnt(0)')
    for i in range(1, 9): k.e('v_add_f32 v%d, v%d, v%d' % (t, t, t + i))
    k.e('v_mov_b32 v%d, v%d' % (v, t))

def row_kernel(name, mode, nsplit=5):
    k = K(name, 128)
    k.guard(256)
    k.ptr(4, 'x'); k.ptr(6, 'ws'); k.ptr(8, 'out')
    k.e('v_and_b32 v1, 63, v0', 'v_lshrrev_b32 v2, 6, v0',
        'v_and_b32 v3, 7, v1', 'v_bfe_u32 v4, v1, 3, 1', 'v_bfe_u32 v5, v1, 4, 1', 'v_lshrrev_b32 v6, 5, v1',
        'v_lshl_add_u32 v6, v2, 1, v6',
        's_lshr_b32 s10, s2, 2', 's_and_b32 s11, s2, 3', 's_lshl_b32 s11, s11, 3',
        'v_lshlrev_b32 v7, 5, v6', 'v_lshl_add_u32 v7, v5, 4, v7', 'v_lshl_add_u32 v7, v4, 3, v7',
        's_lshl_b32 s3, s2, 3', 'v_add_u32 v8, s3, v3', 'v_mul_u32_u24 v8, 1152, v8',
        'v_lshl_add_u32 v8, v7, 1, v8',
        'v_lshlrev_b32 v9, 5, v4', 'v_add_u32 v9, s11, v9', 'v_add_u32 v9, v9, v3',
        'v_lshlrev_b32 v10, 5, v2', 'v_lshl_add_u32 v10, v3, 2, v10', 'v_lshlrev_b32 v11, 2, v3',
        'v_lshlrev_b32 v12, 2, v7',
        's_mul_i32 s12, s10, 18', 'v_add_u32 v13, s12, v6', 'v_lshlrev_b32 v13, 2, v13',
        'v_lshl_add_u32 v13, v5, 1, v13', 'v_lshlrev_b32 v13, 10, v13', 'v_lshl_add_u32 v13, v9, 4, v13',
        's_mul_i32 s12, s10, 36', 'v_lshl_add_u32 v14, v6, 1, v5', 'v_add_u32 v14, s12, v14',
        'v_lshlrev_b32 v14, 10, v14', 'v_lshl_add_u32 v14, v9, 4, v14',
        's_waitcnt lgkmcnt(0)')
    k.srd(16, 6, WS_MOD, 3456 * 4)
    k.srd(20, 6, WS_PART, nsplit * PART_SZ)
    k.srd(24, 6, WS_X1, 2048 * 1152)
    if mode == 'final':
        k.srd(28, 8, 0, 2048 * 1152)
    else:
        k.srd(28, 6, WS_HF if mode == 'ln1' else WS_H2F, 2048 * 1152)
    k.srd(32, 4, 0, 2048 * 1152)
    xs = 's[24:27]' if mode == 'final' else 's[32:35]'
    k.e('buffer_load_dwordx4 v[16:19], v8, %s, 0 offen' % xs)
    def ldmod(dst, idx):
        k.e('s_mov_b32 s36, %d' % (idx * 2304),
            'buffer_load_dwordx4 %s, v12, s[16:19], s36 offen' % vr(dst),
            'buffer_load_dwordx4 %s, v12, s[16:19], s36 offen offset:16' % vr(dst + 4))
    if mode != 'ln1':
        ldmod(20, 2 if mode == 'mid' else 5)
        for sp in range(nsplit):
            k.e('s_mov_b32 s37, %d' % (sp * PART_SZ),
                'buffer_load_dwordx4 %s, v13, s[20:23], s37 offen' % vr(48 + 8 * sp),
                'buffer_load_dwordx4 %s, v13, s[20:23], s37 offen offset:1024' % vr(52 + 8 * sp))
    if mode != 'final':
        ldmod(28, 0 if mode == 'ln1' else 3); ldmod(36, 1 if mode == 'ln1' else 4)
    k.e('s_waitcnt vmcnt(0)')
    unpack8(k, 96, 16)
    if mode != 'ln1':
        for sp in range(1, nsplit):
            for j in range(8): k.e('v_add_f32 v%d, v%d, v%d' % (48 + j, 48 + j, 48 + 8 * sp + j))
        round8(k, 48, 104)
        for j in range(8): k.e('v_mul_f32 v%d, v%d, v%d' % (48 + j, 48 + j, 20 + j))
        round8(k, 48, 104)
        for j in range(8): k.e('v_add_f32 v%d, v%d, v%d' % (96 + j, 96 + j, 48 + j))
        round8(k, 96, 104)
        if mode == 'final':
            k.e('buffer_store_dwordx4 v[104:107], v8, s[28:31], 0 offen', 's_waitcnt vmcnt(0)')
            return k
        k.e('buffer_store_dwordx4 v[104:107], v8, s[24:27], 0 offen')
    k.e('v_add_f32 v108, v96, v97')
    for j in range(2, 8): k.e('v_add_f32 v108, v108, v%d' % (96 + j))
    row_reduce(k, 108, 0, 112)
    k.e('v_mul_f32 v108, 0x3ae38e39, v108')
    for j in range(8): k.e('v_sub_f32 v%d, v%d, v108' % (96 + j, 96 + j))
    k.e('v_mul_f32 v109, v96, v96')
    for j in range(1, 8): k.e('v_fmac_f32 v109, v%d, v%d' % (96 + j, 96 + j))
    row_reduce(k, 109, 512, 112)
    k.e('v_mov_b32 v110, 0x3727c5ac', 'v_fmac_f32 v110, 0x3ae38e39, v109', 'v_rsq_f32 v110, v110', 's_nop 0')
    for j in range(8):
        k.e('v_add_f32 v%d, 1.0, v%d' % (36 + j, 36 + j))
    round8(k, 36, 112)
    for j in range(8):
        k.e('v_mul_f32 v%d, v%d, v110' % (96 + j, 96 + j), 'v_fma_f32 v%d, v%d, v%d, v%d' % (96 + j, 96 + j, 36 + j, 28 + j))
    for i in range(4): k.e('v_cvt_pk_bf16_f32 v%d, v%d, v%d' % (112 + i, 96 + 2 * i, 97 + 2 * i))
    k.e('buffer_store_dwordx4 v[112:115], v14, s[28:31], 0 offen', 's_waitcnt vmcnt(0)')
    return k
```

```python
from base import *

def mfma(k, d, a, b, c):
    k.e('v_mfma_f32_32x32x16_bf16 %s, %s, %s, %s' % (d, a, b, c))

def gemm_stream(k, NB, nst, kps, aread, dma, bload, breg, acc, aring, D, pre_dma=2, bdist=0, pre_done=False):
    nks = nst * kps
    nf = nks * NB
    NR = D + 1
    for st in range(0 if pre_done else pre_dma):
        for f in dma(st): f()
    for ks in range(min(bdist, nks)): bload(ks)
    pend = []
    def read(f):
        ks, nb = divmod(f, NB)
        st, kk = divmod(ks, kps)
        if nb == 0 and kk == 0:
            k.wait_vm(('W', st))
            k.e('s_barrier')
            if st == 0 and k.name != 'k2_attn_kernel': k.stamp(1)
            if st + pre_dma < nst: pend.extend(dma(st + pre_dma))
        r = aring + 4 * (f % NR)
        for jj in range(2):
            va, imm = aread(nb, kk, jj, st % 4)
            k.e('ds_read_b64_tr_b16 %s, v%d offset:%d' % (vr(r + 2 * jj, 2), va, imm))
    for f in range(min(D, nf)): read(f)
    for f in range(nf):
        ks, nb = divmod(f, NB)
        if f + D < nf: read(f + D)
        if pend: pend.pop(0)()
        if nb == 0 and bdist:
            k.wait_vm(('B', ks))
        left = min(D, nf - 1 - f)
        k.e('s_waitcnt lgkmcnt(%d)' % (2 * left))
        mfma(k, acc(nb), vr(aring + 4 * (f % NR)), breg(ks), acc(nb) if ks else '0')
        if nb == NB - 1 and bdist and ks + bdist < nks: bload(ks + bdist)
    assert not pend

def lane_dec(k):
    k.e('v_and_b32 v1, 63, v0', 'v_lshrrev_b32 v6, 6, v0', 's_nop 0', 'v_readfirstlane_b32 s40, v6',
        'v_lshrrev_b32 v2, 5, v1', 'v_bfe_u32 v3, v1, 2, 2', 'v_bfe_u32 v4, v1, 4, 1',
        'v_and_b32 v5, 1, v1', 'v_lshlrev_b32 v5, 4, v5', 'v_bfe_u32 v6, v1, 1, 1', 'v_lshl_add_u32 v5, v6, 3, v5')

def divmod_v(k, q, r, x, d):
    magic, sh = {12: (43691, 19), 18: (58255, 20)}[d]
    k.e('v_mul_u32_u24 v%d, %d, v%d' % (q, magic, x), 'v_lshrrev_b32 v%d, %d, v%d' % (q, sh, q),
        'v_mul_u32_u24 v%d, %d, v%d' % (r, d, q), 'v_sub_u32 v%d, v%d, v%d' % (r, x, r))

def splitk_kernel(name, warg, wsoff, nks_row, nst):
    k = K(name, 128)
    k.guard(240)
    k.ptr(4, warg); k.ptr(6, 'ws')
    k.stamp(0)
    lane_dec(k)
    k.e('s_and_b32 s10, s2, 7', 's_lshr_b32 s11, s2, 3', 's_mul_hi_u32 s12, s11, 0x2aaaaaab',
        's_mul_i32 s13, s12, 6', 's_sub_u32 s11, s11, s13',
        's_lshl_b32 s14, s10, 3', 's_add_u32 s14, s14, s40',
        's_mul_i32 s15, s11, 192', 's_and_b32 s16, s40, 3', 's_add_u32 s16, s16, 8')
    for ii, t in ((0, 's40'), (1, 's16')):
        k.e('s_lshl_b32 s17, %s, 6' % t, 'v_add_u32 v7, s17, v1')
        divmod_v(k, 8, 9, 7, 12)
        k.e('v_mul_u32_u24 v8, 1152, v8', 'v_lshl_add_u32 v8, v9, 4, v8', 'v_add_u32 v%d, s15, v8' % (10 + ii),
            's_lshl_b32 s%d, %s, 10' % (44 + ii, t))
    k.e('v_lshl_add_u32 v7, v2, 3, v3', 'v_mul_u32_u24 v7, 192, v7', 'v_lshl_add_u32 v7, v4, 5, v7',
        'v_add_u32 v12, v7, v5',
        's_mul_i32 s17, s14, %d' % (nks_row * 1024), 'v_lshlrev_b32 v13, 4, v1', 'v_add_u32 v13, s17, v13',
        's_mul_i32 s18, s12, %d' % (nst * 4096),
        's_mul_i32 s19, s12, %d' % (nst * 64 * 1152),
        's_waitcnt lgkmcnt(0)')
    k.srd(20, 4, 0, nks_row * 16 * 1152)
    k.srd(24, 6, wsoff, 64 * nks_row * 1024)
    k.srd(28, 6, WS_PART, 5 * PART_SZ)
    def dma(st):
        def mk(ii):
            def f():
                k.e('s_add_u32 m0, s%d, %d' % (44 + ii, (st % 4) * 12288))
                if ii == 0: k.e('s_add_u32 s33, s19, %d' % (st * 64 * 1152))
                else: k.e('s_nop 0')
                k.vmem('buffer_load_dwordx4 v%d, s[20:23], s33 offen lds' % (10 + ii), ('W', st))
            return f
        return [mk(0), mk(1)]
    BD = 8
    def bload(ks):
        if ks % 4 == 0: k.e('s_add_u32 s34, s18, %d' % (ks * 1024))
        k.vmem('buffer_load_dwordx4 %s, v13, s[24:27], s34 offen offset:%d' % (vr(64 + 4 * (ks % BD)), (ks % 4) * 1024), ('B', ks))
    gemm_stream(k, 3, nst, 4, lambda nb, kk, jj, sl: (12, sl * 12288 + (16 * kk + 4 * jj) * 192 + 64 * nb),
                dma, bload, lambda ks: vr(64 + 4 * (ks % BD)), lambda nb: vr(16 + 16 * nb, 16), 96, 5, bdist=BD)
    k.stamp(2)
    k.e('s_mul_i32 s17, s14, 18', 's_mul_i32 s13, s11, 3', 's_add_u32 s17, s17, s13', 's_lshl_b32 s17, s17, 12',
        's_mul_i32 s13, s12, %d' % PART_SZ, 's_add_u32 s17, s17, s13', 'v_lshlrev_b32 v13, 4, v1', 's_nop 15')
    for nb in range(3):
        k.e('s_add_u32 s13, s17, %d' % (nb * 4096))
        for q in range(4):
            k.e('buffer_store_dwordx4 %s, v13, s[28:31], s13 offen offset:%d' % (vr(16 + 16 * nb + 4 * q), q * 1024))
    k.stamp(3)
    k.e('s_waitcnt vmcnt(0)')
    k.dump(4)
    return k

def gateup_kernel(name):
    k = K(name, 256)
    k.guard(256)
    k.ptr(4, 'wg'); k.ptr(6, 'wu'); k.ptr(8, 'ws')
    k.stamp(0)
    lane_dec(k)
    k.e('s_and_b32 s10, s2, 7', 's_bfe_u32 s11, s2, 0x20003', 's_lshl_b32 s11, s11, 3', 's_add_u32 s11, s11, s10',
        's_lshr_b32 s12, s2, 5', 's_lshl_b32 s14, s12, 3', 's_add_u32 s14, s14, s40',
        's_mul_i32 s15, s11, 288')
    for ii in range(5):
        if ii < 4: k.e('s_add_u32 s16, s40, %d' % (8 * ii))
        else: k.e('s_and_b32 s16, s40, 3', 's_add_u32 s16, s16, 32')
        k.e('s_cmp_ge_u32 s16, 18', 's_cselect_b32 s17, 18, 0', 's_cselect_b32 s18, 18560, 0',
            's_sub_u32 s16, s16, s17', 's_lshl_b32 s17, s16, 10', 's_add_u32 s%d, s17, s18' % (44 + ii),
            's_lshl_b32 s17, s16, 6', 'v_add_u32 v7, s17, v1')
        divmod_v(k, 8, 9, 7, 18)
        k.e('v_mul_u32_u24 v8, 9216, v8', 'v_lshl_add_u32 v8, v9, 4, v8', 'v_add_u32 v%d, s15, v8' % (10 + ii))
    k.e('v_lshl_add_u32 v7, v2, 3, v3', 'v_mul_u32_u24 v7, 288, v7', 'v_mul_u32_u24 v8, 18560, v4',
        'v_add3_u32 v15, v7, v8, v5', 'v_add_u32 v9, 74240, v15',
        's_mul_i32 s17, s14, %d' % (36 * 1024), 'v_lshlrev_b32 v6, 4, v1', 'v_add_u32 v6, s17, v6',
        's_waitcnt lgkmcnt(0)')
    k.srd(20, 4, 0, 576 * 9216); k.srd(24, 6, 0, 576 * 9216)
    k.srd(28, 8, WS_H2F, 2048 * 1152); k.srd(36, 8, WS_ACT, 2048 * 9216)
    k.e('s_cmp_lt_u32 s40, 2')
    for i in range(4): k.e('s_cselect_b32 s%d, s%d, s%d' % (52 + i, 20 + i, 24 + i))
    srds = ['s[20:23]', 's[20:23]', 's[52:55]', 's[24:27]', 's[24:27]']
    def dma(st):
        def mk(ii):
            def f():
                k.e('s_add_u32 m0, s%d, %d' % (44 + ii, (st % 4) * 37120))
                if ii == 0: k.e('s_mov_b32 s33, %d' % (st * 64 * 9216))
                else: k.e('s_nop 0')
                k.vmem('buffer_load_dwordx4 v%d, %s, s33 offen lds' % (10 + ii, srds[ii]), ('W', st))
            return f
        return [mk(i) for i in range(5)]
    BD = 4
    def bload(ks):
        if ks % 4 == 0: k.e('s_mov_b32 s34, %d' % (ks * 1024))
        k.vmem('buffer_load_dwordx4 %s, v6, s[28:31], s34 offen offset:%d' % (vr(160 + 4 * (ks % BD)), (ks % 4) * 1024), ('B', ks))
    def aread(b, kk, jj, sl):
        return (15 if sl < 2 else 9, (sl % 2) * 37120 + (16 * kk + 4 * jj) * 288 + 32 * b)
    gemm_stream(k, 9, 9, 4, aread, dma, bload, lambda ks: vr(160 + 4 * (ks % BD)),
                lambda nb: vr(16 + 16 * nb, 16), 176, 5, bdist=BD)
    k.stamp(2)
    k.e('s_mul_i32 s17, s14, 288', 's_mul_i32 s13, s11, 9', 's_add_u32 s17, s17, s13', 's_lshl_b32 s17, s17, 10',
        'v_lshlrev_b32 v13, 4, v1', 's_nop 15')
    for b in range(9):
        g, u, t = 16 + 16 * b, 24 + 16 * b, 208 + 16 * (b % 2)
        for j in range(8): k.e('v_mul_f32 v%d, 0xbfb8aa3b, v%d' % (t + j, g + j))
        for j in range(8): k.e('v_exp_f32 v%d, v%d' % (t + j, t + j))
        for j in range(0, 8, 2): k.e('v_pk_mul_f32 %s, %s, %s' % (vr(g + j, 2), vr(g + j, 2), vr(u + j, 2)))
        for j in range(8): k.e('v_add_f32 v%d, 1.0, v%d' % (t + j, t + j))
        for j in range(8): k.e('v_rcp_f32 v%d, v%d' % (t + j, t + j))
        k.e('s_nop 0')
        for j in range(0, 8, 2): k.e('v_pk_mul_f32 %s, %s, %s' % (vr(g + j, 2), vr(g + j, 2), vr(t + j, 2)))
        for i in range(4): k.e('v_cvt_pk_bf16_f32 v%d, v%d, v%d' % (t + 8 + i, g + 2 * i, g + 2 * i + 1))
        k.e('s_add_u32 s13, s17, %d' % (b * 1024),
            'buffer_store_dwordx4 %s, v13, s[36:39], s13 offen' % vr(t + 8))
    k.stamp(3)
    k.e('s_waitcnt vmcnt(0)')
    k.dump(4)
    return k
```

```python
from base import *
import os, sys
from gemm import mfma, gemm_stream, lane_dec

S = lambda par, hd: par * 32 + hd * 16
P = lambda par, hd, ks: 64 + par * 16 + hd * 8 + ks * 4
NEGM = lambda hd: 96 + hd * 16
ET, LS, PS, TMP = 128, 136, 138, 140
KA, VA, KD0, KD1, VD = 144, 152, 156, 157, 158
O = lambda hd, db: hd * 64 + db * 16
Q = lambda hd, s: 128 + (hd * 8 + s) * 4
KF = lambda s: 192 + 4 * s
VF = lambda ks, db: 224 + 4 * (ks * 4 + db)
KBASE, VBASE, WBASE = 0, 32768, 65536
QSCALE = 0x3e0293ee
THRESH = 0x67800000

def softmax_ops(par):
    ops = []
    seq = [(hd, j) for hd in range(2) for j in range(16)]
    et = lambda i: ET + i % 8
    for i in range(len(seq) + 1):
        g = []
        if i < len(seq):
            hd, j = seq[i]
            g.append('v_exp_f32 v%d, v%d' % (et(i), S(par, hd) + j))
        if i >= 1:
            hd, j = seq[i - 1]
            if j == 1: g.append('v_add_f32 v%d, v%d, v%d' % (PS + hd, et(i - 2), et(i - 1)))
            elif j > 1: g.append('v_add_f32 v%d, v%d, v%d' % (PS + hd, PS + hd, et(i - 1)))
            if j % 2 == 1:
                g.append('v_cvt_pk_bf16_f32 v%d, v%d, v%d' % (P(par, hd, j // 8) + (j % 8) // 2, et(i - 2), et(i - 1)))
        if 'noexp' in OPT: g = [x for x in g if 'v_exp' not in x]
        if 'noadd' in OPT: g = [x for x in g if 'v_add' not in x]
        if 'nocvt' in OPT: g = [x for x in g if 'v_cvt' not in x]
        if 'exp2mov' in OPT: g = [x.replace('v_exp_f32', 'v_mov_b32') for x in g]
        ops.append(g)
    return ops

def kread(s, slot): return 'ds_read_b128 %s, v%d offset:%d' % (ar(KF(s)), KA + s, slot * 8192)
def vread(ks, db, jj, slot):
    return 'ds_read_b64_tr_b16 %s, v%d offset:%d' % (ar(VF(ks, db) + 2 * jj, 2), VA + db, slot * 8192 + (16 * ks + 8 * jj) * 256)

def dma_k(k, slot):
    return [['s_add_u32 m0, s41, %d' % (KBASE + slot * 8192), 's_nop 0',
             'buffer_load_dwordx4 v%d, s[20:23], s42 offen lds' % KD0],
            ['buffer_load_dwordx4 v%d, s[20:23], s42 offen offset:2048 lds' % KD1]]
def dma_v(k, slot):
    return [['s_add_u32 m0, s41, %d' % (VBASE + slot * 8192), 's_nop 0',
             'buffer_load_dwordx4 v%d, s[24:27], s43 offen lds' % VD],
            ['buffer_load_dwordx4 v%d, s[24:27], s43 offen offset:2048 lds' % VD]]

def qk_mfmas(par):
    return [('v_mfma_f32_32x32x16_bf16 %s, %s, %s, %s' % (vr(S(par, hd), 16), ar(KF(s)), ar(Q(hd, s)),
             vr(NEGM(hd), 16) if s == 0 else vr(S(par, hd), 16))) for s in range(8) for hd in range(2)]
def pv_mfmas(par):
    return [('v_mfma_f32_32x32x16_bf16 %s, %s, %s, %s' % (ar(O(hd, db), 16), ar(VF(ks, db)), vr(P(par, hd, ks)), ar(O(hd, db), 16)))
            for ks in range(2) for db in range(4) for hd in range(2)]

def rescale(k, par, init):
    k.e('s_nop 15', 's_nop 7')
    for hd in range(2):
        s, d = S(par, hd), TMP
        k.e('v_max3_f32 v%d, v%d, v%d, v%d' % (d, s, s + 1, s + 2))
        for j in range(3, 15, 2): k.e('v_max3_f32 v%d, v%d, v%d, v%d' % (d, d, s + j, s + j + 1))
        k.e('v_max_f32 v%d, v%d, v%d' % (d, d, s + 15), 'v_mov_b32 v%d, v%d' % (d + 1, d), 's_nop 1',
            'v_permlane32_swap_b32 v%d, v%d' % (d, d + 1), 's_nop 1', 'v_max_f32 v%d, v%d, v%d' % (d, d, d + 1))
        if not init: k.e('v_max_f32 v%d, 0, v%d' % (d, d))
        for j in range(16):
            k.e('v_sub_f32 v%d, v%d, v%d' % (s + j, s + j, d),
                'v_sub_f32 v%d, v%d, v%d' % (S(par ^ 1, hd) + j, S(par ^ 1, hd) + j, d),
                'v_sub_f32 v%d, v%d, v%d' % (NEGM(hd) + j, NEGM(hd) + j, d))
        if not init:
            k.e('v_sub_f32 v%d, 0, v%d' % (d + 1, d), 'v_exp_f32 v%d, v%d' % (d + 1, d + 1), 's_nop 0',
                'v_mul_f32 v%d, v%d, v%d' % (LS + hd, LS + hd, d + 1))
            for r in range(0, 64, 4):
                for j in range(4): k.e('v_accvgpr_read_b32 v%d, a%d' % (ET + j, hd * 64 + r + j))
                for j in range(4): k.e('v_mul_f32 v%d, v%d, v%d' % (ET + j, ET + j, d + 1))
                for j in range(4): k.e('v_accvgpr_write_b32 a%d, v%d' % (hd * 64 + r + j, ET + j))
    for g in softmax_ops(par):
        k.e(*g)
        k.e('s_nop 0')
    k.e('s_nop 1')

def sm_stream(par):
    seq = [(hd, j) for hd in range(2) for j in range(16)]
    et = lambda i: ET + i % 8
    out = []
    for i in range(len(seq) + 1):
        if i < len(seq):
            hd, j = seq[i]
            out.append((8, 'v_exp_f32 v%d, v%d' % (et(i), S(par, hd) + j)))
        if i >= 1:
            hd, j = seq[i - 1]
            if j == 1: out.append((4, 'v_add_f32 v%d, v%d, v%d' % (PS + hd, et(i - 2), et(i - 1))))
            elif j > 1: out.append((4, 'v_add_f32 v%d, v%d, v%d' % (PS + hd, PS + hd, et(i - 1))))
            if j % 2 == 1:
                out.append((4, 'v_cvt_pk_bf16_f32 v%d, v%d, v%d' % (P(par, hd, j // 8) + (j % 8) // 2, et(i - 2), et(i - 1))))
    out.insert(len(out) - 2, (4, 's_nop 0'))
    out += [(4, 'v_max_f32 v%d, v%d, v%d' % (TMP, PS, PS + 1)), (4, 'v_cmp_nge_f32 vcc, s44, v%d' % TMP)]
    return out

CAP = int(PARAM.get('cap', 24)); DC = int(PARAM.get('dc', 16))
DPOS = [int(x) for x in PARAM.get('dpos', '12.14.26.28').split('.')]

def window(k, w4, do_qk=True, do_sm=True, kdma=True, vdma=True, kpre=True, tag='', prev_sm=True):
    par = w4 & 1
    k.e('s_waitcnt vmcnt(%d) lgkmcnt(0)' % WAITN[0], 's_barrier')
    WAITN[0] = 2 * (kdma + vdma)
    qk = qk_mfmas(par) if do_qk else []
    pv = pv_mfmas(par)
    mf = qk + pv
    n = len(mf)
    fill = [[] for _ in mf]
    used = [0] * n
    def put(g, items, cost):
        fill[g] += items; used[g] += cost
    if prev_sm:
        put(0, ['v_add_f32 v%d, v%d, v%d' % (LS, LS, PS), 'v_add_f32 v%d, v%d, v%d' % (LS + 1, LS + 1, PS + 1)], 8)
    vrd = [vread(ks, db, jj, w4) for ks in range(2) for db in range(4) for jj in range(2)]
    pre = []
    lds = 'nolds' not in OPT
    if do_qk:
        for i, r in enumerate(vrd):
            if lds: put((i * 3) // 4, [r], 4)
    else: pre = vrd
    npv0 = len(qk)
    if kpre and lds:
        for s in range(8): put(npv0 + s + (1 if s < 4 else 2), [kread(s, (w4 + 3) % 4)], 4)
    dm = (dma_k(k, (w4 + 1) % 4) if kdma else []) + (dma_v(k, (w4 + 2) % 4) if vdma else [])
    pos = DPOS if do_qk else [10, 11, 12, 13]
    if 'nodma' in OPT: dm = []
    for i, d in enumerate(dm): put(pos[i], d, DC + (4 if len(d) > 1 else 0))
    if dm: put(pos[len(dm) - 1] + 1, ['s_add_u32 s42, s42, 8192', 's_add_u32 s43, s43, 8192'], 4)
    if do_sm and 'nosm' not in OPT:
        st = sm_stream(par ^ 1)
        cap = CAP if n == 32 else 1000 // n
        g = 0
        while st:
            c, t = st[0]
            if used[g] + c > cap and g < n - 1:
                g += 1; continue
            st.pop(0); fill[g].insert(len([x for x in fill[g] if x.startswith('v_')]), t); used[g] += c
        if tag == 'L' and w4 == 0: print('gap load', used, file=sys.stderr)
    k.e(*pre)
    for i, m in enumerate(mf):
        if i == npv0: k.e('s_waitcnt lgkmcnt(0)')
        k.e(m)
        k.e(*fill[i])
    if do_sm:
        lab = 'att_%s%d' % (tag, w4)
        k.e('s_cbranch_vccnz %s_slow' % lab, '%s_back:' % lab)
        STUBS.append((lab, par ^ 1))

WAITN = [0]
STUBS = []

def attn_kernel(name):
    k = K(name, 256, 256)
    k.guard(256)
    k.ptr(4, 'k'); k.ptr(6, 'v'); k.ptr(8, 'wq'); k.ptr(10, 'ws')
    stamp = k.stamp
    stamp(0)
    lane_dec(k)
    k.e('s_and_b32 s12, s2, 7', 's_lshl_b32 s12, s12, 1', 's_bfe_u32 s13, s2, 0x10003', 's_add_u32 s12, s12, s13',
        's_lshr_b32 s13, s2, 4', 's_lshl_b32 s14, s13, 2', 's_add_u32 s14, s14, s40',
        's_lshl_b32 s15, s12, 19', 's_sub_u32 s16, %d, s15' % (16 << 19), 's_lshl_b32 s17, s12, 9',
        's_and_b32 s18, s40, 1', 's_lshr_b32 s19, s40, 1', 's_lshl_b32 s19, s19, 2', 's_add_u32 s18, s18, s19',
        's_lshl_b32 s41, s18, 10', 's_mov_b32 s44, 0x%x' % THRESH)
    k.e('v_and_b32 v6, 31, v1', 'v_and_b32 v7, 15, v1', 'v_xor_b32 v7, v7, v2', 'v_lshlrev_b32 v8, 8, v6')
    for s in range(8):
        k.e('v_xor_b32 v9, %d, v7' % (2 * s), 'v_lshl_add_u32 v%d, v9, 4, v8' % (KA + s))
    k.e('v_lshl_add_u32 v6, v2, 2, v3', 'v_lshlrev_b32 v6, 8, v6', 'v_lshl_add_u32 v6, v4, 5, v6', 'v_add_u32 v6, v6, v5',
        'v_add_u32 v6, %d, v6' % VBASE)
    for db in range(4):
        k.e('v_xor_b32 v9, %d, v3' % db, 'v_lshl_add_u32 v%d, v9, 6, v6' % (VA + db))
    k.e('v_lshrrev_b32 v6, 4, v1', 'v_and_b32 v7, 15, v1')
    for jx, reg in ((0, KD0), (1, KD1)):
        k.e('s_add_u32 s19, s18, %d' % (2 * jx), 's_lshl_b32 s19, s19, 2', 'v_add_u32 v8, s19, v6',
            'v_and_b32 v9, 15, v8', 'v_xor_b32 v9, v9, v7', 'v_lshlrev_b32 v9, 4, v9', 'v_lshl_add_u32 v%d, v8, 8, v9' % reg)
    k.e('v_subrev_u32 v%d, 2048, v%d' % (KD1, KD1))
    k.e('s_lshl_b32 s19, s18, 2', 'v_add_u32 v8, s19, v6', 'v_lshlrev_b32 v9, 2, v6', 'v_xor_b32 v9, v9, v7',
        'v_lshlrev_b32 v9, 4, v9', 'v_lshl_add_u32 v%d, v8, 8, v9' % VD)
    k.e('v_lshrrev_b32 v6, 5, v1', 's_lshl_b32 s19, s40, 1', 'v_add_u32 v6, s19, v6', 'v_and_b32 v7, 3, v6',
        'v_lshlrev_b32 v7, 2, v7', 'v_and_b32 v8, 31, v1', 'v_xor_b32 v7, v7, v8', 'v_lshlrev_b32 v7, 4, v7',
        'v_lshlrev_b32 v6, 13, v6', 'v_add3_u32 v159, v6, v7, s17', 's_lshl_b32 s45, s40, 10',
        'v_lshl_add_u32 v6, v2, 3, v3', 'v_lshlrev_b32 v6, 9, v6', 'v_lshl_add_u32 v6, v4, 5, v6', 'v_add_u32 v6, v6, v5',
        'v_add_u32 v6, %d, v6' % WBASE)
    for q in range(4):
        k.e('v_xor_b32 v9, %d, v3' % q, 'v_lshl_add_u32 v%d, v9, 6, v6' % (188 + q))
    k.e('s_mul_i32 s19, s14, %d' % (36 * 1024), 'v_lshlrev_b32 v160, 4, v1', 'v_add_u32 v160, s19, v160',
        'v_lshlrev_b32 v161, 4, v1', 's_waitcnt lgkmcnt(0)')
    k.srd(20, 4, 's15', 's16'); k.srd(24, 6, 's15', 's16')
    k.srd(28, 8, 0, 576 * 8192); k.srd(32, 10, WS_HF, 2048 * 1152); k.srd(36, 10, WS_OF, 2048 * 8192)
    def wdma(st):
        def mk(jx):
            def f():
                k.e('s_add_u32 m0, s45, %d' % (WBASE + (st % 4) * 16384 + jx * 4096),
                    's_mov_b32 s46, %d' % ((st * 32 + 8 * jx) * 8192))
                k.vmem('buffer_load_dwordx4 v159, s[28:31], s46 offen lds', ('W', st))
            return f
        return [mk(j) for j in range(4)]
    for f in wdma(0) + wdma(1): f()
    for ks in range(36):
        if ks % 4 == 0: k.e('s_mov_b32 s47, %d' % (ks * 1024))
        k.vmem('buffer_load_dwordx4 %s, v160, s[32:35], s47 offen offset:%d' % (vr(4 * ks), (ks % 4) * 1024), ('B', ks))
    for u in range(4):
        k.e('s_mov_b32 s42, %d' % (u * 8192))
        for g in dma_k(k, u):
            k.e(*g[:-1]); k.vmem(g[-1], 'KV')
    for u in range(2):
        k.e('s_mov_b32 s43, %d' % (u * 8192))
        for g in dma_v(k, u):
            k.e(*g[:-1]); k.vmem(g[-1], 'KV')
    seen = set()
    def breg(ks):
        if ks not in seen:
            seen.add(ks); k.wait_vm(('B', ks))
        return vr(4 * ks)
    gemm_stream(k, 8, 18, 2, lambda nb, kk, jj, sl: (188 + (nb & 3), sl * 16384 + (16 * kk + 4 * jj) * 512 + (nb >> 2) * 256),
                wdma, None, breg, lambda nb: ar(16 * nb, 16), 162, 5, pre_dma=2, bdist=0, pre_done=True)
    stamp(1)
    k.e('s_nop 15', 's_mov_b32 s46, 0x%x' % QSCALE)
    for hd in range(2):
        for s in range(8):
            src = 16 * (hd * 4 + s // 2) + 8 * (s % 2)
            for j in range(8): k.e('v_accvgpr_read_b32 v%d, a%d' % (j, src + j))
            for j in range(8): k.e('v_mul_f32 v%d, s46, v%d' % (j, j))
            for i in range(4): k.e('v_cvt_pk_bf16_f32 v%d, v%d, v%d' % (8 + i, 2 * i, 2 * i + 1))
            for i in range(4): k.e('v_accvgpr_write_b32 a%d, v%d' % (Q(hd, s) + i, 8 + i))
    for r in range(128): k.e('v_accvgpr_write_b32 a%d, 0' % r)
    for r in range(32): k.e('v_mov_b32 v%d, 0' % (NEGM(0) + r))
    k.e('v_mov_b32 v%d, 0' % LS, 'v_mov_b32 v%d, 0' % (LS + 1))
    k.wait_all()
    k.e('s_barrier')
    for u in range(2):
        for s in range(8): k.e(kread(s, u))
        k.e('s_waitcnt lgkmcnt(0)')
        k.e(*qk_mfmas(u))
        k.e('s_nop 7')
    k.e('s_barrier', 's_mov_b32 s42, %d' % (4 * 8192))
    for g in dma_k(k, 0): k.e(*g)
    for s in range(8): k.e(kread(s, 2))
    rescale(k, 0, True)
    k.e('s_mov_b32 s42, %d' % (5 * 8192), 's_mov_b32 s43, %d' % (2 * 8192), 's_mov_b32 s47, 14')
    stamp(2)
    k.e('.p2align 3', 'att_loop:')
    WAITN[0] = 4
    for w4 in range(4): window(k, w4, tag='L')
    k.e('s_sub_u32 s47, s47, 1', 's_cmp_lg_u32 s47, 0', 's_cbranch_scc1 att_loop')
    stamp(3)
    for w in range(56, 64):
        window(k, w % 4, do_qk=w <= 61, do_sm=w <= 62, kdma=w <= 58, vdma=w <= 61, kpre=w <= 60, tag='T%d_' % w)
    stamp(4)
    k.e('s_nop 15', 's_lshl_b32 s19, s14, 8', 's_lshl_b32 s13, s12, 4', 's_add_u32 s19, s19, s13', 's_lshl_b32 s19, s19, 10')
    for hd in range(2):
        k.e('v_mov_b32 v0, v%d' % (LS + hd), 'v_mov_b32 v1, v%d' % (LS + hd), 's_nop 1', 'v_permlane32_swap_b32 v0, v1',
            's_nop 1', 'v_add_f32 v0, v0, v1', 'v_rcp_f32 v0, v0', 's_nop 0')
        for db in range(4):
            for sp in range(2):
                t = 16 + 16 * ((db * 2 + sp) % 4)
                src = O(hd, db) + 8 * sp
                for j in range(8): k.e('v_accvgpr_read_b32 v%d, a%d' % (t + j, src + j))
                for j in range(8): k.e('v_mul_f32 v%d, v%d, v0' % (t + j, t + j))
                for i in range(4): k.e('v_cvt_pk_bf16_f32 v%d, v%d, v%d' % (t + 8 + i, t + 2 * i, t + 2 * i + 1))
                k.e('s_add_u32 s13, s19, %d' % ((hd * 8 + 2 * db + sp) * 1024),
                    'buffer_store_dwordx4 %s, v161, s[36:39], s13 offen' % vr(t + 8))
    k.e('s_waitcnt vmcnt(0)')
    k.dump(5)
    t = K('x', 0)
    for lab, par in STUBS:
        t.e('%s_slow:' % lab, 's_call_b64 s[48:49], att_sub%d' % par, 's_branch %s_back' % lab)
    for par in range(2):
        t.e('att_sub%d:' % par)
        rescale(t, par, False)
        t.e('s_setpc_b64 s[48:49]')
    k.tail = t.L
    return k
```

```python
WS_MOD, WS_HF, WS_H2F, WS_X1 = 0x0, 0x10000, 0x300000, 0x600000
WS_OF, WS_ACT, WS_PART = 0x1000000, 0x2000000, 0x4000000
PART_SZ = 2048 * 576 * 4
ARG = dict(x=0, k=8, v=16, wq=24, wo=32, wg=48, wu=56, wd=64, c=72, wmod=80, out=88, ws=104)
import os
OPT = set(os.environ.get('OPT', '').split(','))
PARAM = dict(x.split('=') for x in os.environ.get('PARAM', '').split(',') if x)
LOG2E = 0x3fb8aa3b
SW = [0, 2, 1, 3]

class K:
    def __init__(s, name, vgpr, agpr=0):
        s.name, s.L, s.vm, s.vgpr, s.agpr = name, [], [], vgpr, agpr
    def e(s, *lines):
        for l in lines: s.L.append(l if l.endswith(':') else '    ' + l)
    def vmem(s, line, tag=None):
        s.e(line); s.vm.append(tag)
    def wait_vm(s, tag, extra=''):
        idx = [i for i, t in enumerate(s.vm) if t == tag]
        if not idx:
            if extra: s.e('s_waitcnt ' + extra)
            return
        n = len(s.vm) - 1 - idx[-1]
        s.e('s_waitcnt vmcnt(%d) %s' % (min(n, 63), extra))
        s.vm = s.vm[idx[-1] + 1:]
    def wait_all(s):
        s.e('s_waitcnt vmcnt(0) lgkmcnt(0)'); s.vm = []
    def ptr(s, reg, arg):
        s.e('s_load_dwordx2 s[%d:%d], s[0:1], %d' % (reg, reg + 1, ARG[arg]))
    def srd(s, d, p, off, size):
        s.e('s_add_u32 s%d, s%d, %s' % (d, p, off), 's_addc_u32 s%d, s%d, 0' % (d + 1, p + 1),
            's_mov_b32 s%d, %s' % (d + 2, size), 's_mov_b32 s%d, 0x20000' % (d + 3))
    def guard(s, n):
        s.e('s_cmp_ge_u32 s2, %d' % n, 's_cbranch_scc1 %s_end' % s.name)
    def stamp(s, i):
        if 'time' in OPT:
            s.e('s_memtime s[%d:%d]' % (60 + 2 * i, 61 + 2 * i))
            if i == 0: s.e('s_memrealtime s[80:81]')
    def dump(s, n, wavereg='s40', wg=37):
        if 'time' not in OPT: return
        s.stamp(n)
        s.e('s_memrealtime s[82:83]')
        s.e('s_load_dwordx2 s[4:5], s[0:1], 96', 's_waitcnt lgkmcnt(0)', 's_cmp_lg_u32 s2, %d' % wg, 's_cbranch_scc1 %s_end' % s.name)
        s.srd(8, 4, 0, 256)
        s.e('s_lshl_b32 s13, %s, 5' % wavereg, 'v_mov_b32 v0, s13')
        for i in range(n):
            s.e('s_sub_u32 s13, s%d, s%d' % (62 + 2 * i, 60 + 2 * i), 'v_mov_b32 v1, s13',
                'buffer_store_dword v1, v0, s[8:11], 0 offen offset:%d' % (4 * i))
        s.e('s_sub_u32 s13, s82, s80', 'v_mov_b32 v1, s13', 'buffer_store_dword v1, v0, s[8:11], 0 offen offset:20', 's_waitcnt vmcnt(0)')
    def text(s):
        acc = (s.vgpr + 3) // 4 * 4
        tot = acc + s.agpr if s.agpr else s.vgpr
        h = ['.text', '.globl %s' % s.name, '.p2align 8', '.type %s,@function' % s.name, s.name + ':']
        t = ['%s_end:' % s.name, '    s_endpgm'] + getattr(s, 'tail', [])
        d = ['.section .rodata,"a"', '.p2align 6', '.amdhsa_kernel %s' % s.name,
             '  .amdhsa_next_free_vgpr %d' % tot, '  .amdhsa_next_free_sgpr 96',
             '  .amdhsa_accum_offset %d' % acc, '  .amdhsa_group_segment_fixed_size 0',
             '  .amdhsa_kernarg_size 112', '  .amdhsa_user_sgpr_count 2',
             '  .amdhsa_user_sgpr_kernarg_segment_ptr 1', '  .amdhsa_system_sgpr_workgroup_id_x 1',
             '.end_amdhsa_kernel']
        return '\n'.join(h + s.L + t + d) + '\n'

def vr(b, n=4): return 'v[%d:%d]' % (b, b + n - 1)
def ar(b, n=4): return 'a[%d:%d]' % (b, b + n - 1)

def unpack8(k, dst, src):
    for i in range(4):
        k.e('v_lshlrev_b32 v%d, 16, v%d' % (dst + 2 * i, src + i),
            'v_and_b32 v%d, 0xffff0000, v%d' % (dst + 2 * i + 1, src + i))

def round8(k, v, tmp):
    for i in range(4): k.e('v_cvt_pk_bf16_f32 v%d, v%d, v%d' % (tmp + i, v + 2 * i, v + 2 * i + 1))
    unpack8(k, v, tmp)

def gemv_kernel():
    k = K('k0_mod_kernel', 64)
    k.guard(108)
    k.ptr(4, 'c'); k.ptr(6, 'wmod'); k.ptr(8, 'ws')
    k.e('v_and_b32 v1, 3, v0', 'v_lshrrev_b32 v2, 2, v0', 's_lshl_b32 s3, s2, 6',
        'v_mul_u32_u24 v3, 6912, v2', 'v_lshl_add_u32 v3, v1, 4, v3', 'v_add_u32 v3, s3, v3',
        'v_lshlrev_b32 v4, 1, v2', 's_waitcnt lgkmcnt(0)')
    k.srd(12, 4, 0, 1152); k.srd(16, 6, 0, 576 * 6912); k.srd(20, 8, WS_MOD, 3456 * 4)
    for i in range(9):
        k.e('buffer_load_ushort v%d, v4, s[12:15], 0 offen offset:%d' % (5 + i, 128 * i))
    for i in range(9):
        k.e('s_mov_b32 s24, %d' % (i * 64 * 6912),
            'buffer_load_dwordx4 %s, v3, s[16:19], s24 offen' % vr(16 + 4 * i))
    for j in range(8): k.e('v_mov_b32 v%d, 0' % (52 + j))
    k.e('s_waitcnt vmcnt(9)')
    for i in range(9):
        c = 5 + i
        k.e('v_lshlrev_b32 v%d, 16, v%d' % (c, c), 'v_mul_f32 v14, 0xbfb8aa3b, v%d' % c, 'v_exp_f32 v14, v14',
            's_nop 0', 'v_add_f32 v14, 1.0, v14', 'v_rcp_f32 v14, v14', 's_nop 0', 'v_mul_f32 v14, v14, v%d' % c,
            'v_cvt_pk_bf16_f32 v14, v14, v14', 'v_lshlrev_b32 v%d, 16, v14' % c)
    for i in range(9):
        k.e('s_waitcnt vmcnt(%d)' % (8 - i))
        for q in range(4):
            k.e('v_lshlrev_b32 v14, 16, v%d' % (16 + 4 * i + q), 'v_and_b32 v15, 0xffff0000, v%d' % (16 + 4 * i + q),
                'v_fmac_f32 v%d, v14, v%d' % (52 + 2 * q, 5 + i), 'v_fmac_f32 v%d, v15, v%d' % (53 + 2 * q, 5 + i))
    k.e('v_lshlrev_b32 v1, 5, v0', 'ds_write_b128 v1, v[52:55]', 'ds_write_b128 v1, v[56:59] offset:16',
        's_waitcnt lgkmcnt(0)', 's_barrier')
    k.e('v_and_b32 v2, 31, v0', 'v_lshrrev_b32 v3, 5, v0', 'v_lshrrev_b32 v4, 3, v2', 'v_and_b32 v5, 7, v2',
        'v_lshlrev_b32 v4, 5, v4', 'v_lshl_add_u32 v4, v5, 2, v4', 'v_lshl_add_u32 v4, v3, 10, v4')
    for i in range(8): k.e('ds_read_b32 v%d, v4 offset:%d' % (16 + i, 128 * i))
    k.e('s_waitcnt lgkmcnt(0)')
    for i in range(1, 8): k.e('v_add_f32 v16, v16, v%d' % (16 + i))
    k.e('v_lshlrev_b32 v6, 2, v0', 'ds_write_b32 v6, v16 offset:8192', 's_waitcnt lgkmcnt(0)', 's_barrier',
        'v_lshlrev_b32 v6, 2, v2')
    for i in range(8): k.e('ds_read_b32 v%d, v6 offset:%d' % (16 + i, 8192 + 128 * i))
    k.e('s_waitcnt lgkmcnt(0)')
    for i in range(1, 8): k.e('v_add_f32 v16, v16, v%d' % (16 + i))
    k.e('v_cvt_pk_bf16_f32 v16, v16, v16', 'v_lshlrev_b32 v16, 16, v16', 's_lshl_b32 s3, s2, 7',
        'v_add_u32 v6, s3, v6', 'v_cmp_gt_u32 vcc, 32, v0', 's_and_saveexec_b64 s[26:27], vcc',
        's_cbranch_execz k0_mod_kernel_end', 'buffer_store_dword v16, v6, s[20:23], 0 offen', 's_waitcnt vmcnt(0)')
    return k

def row_reduce(k, v, slotoff, t):
    k.e('s_nop 1', 'v_add_f32_dpp v%d, v%d, v%d row_ror:8 row_mask:0xf bank_mask:0xf' % (v, v, v),
        'ds_swizzle_b32 v%d, v%d offset:0x401F' % (t, v), 's_waitcnt lgkmcnt(0)',
        'v_add_f32 v%d, v%d, v%d' % (v, v, t), 'v_mov_b32 v%d, v%d' % (t, v), 's_nop 1',
        'v_permlane32_swap_b32 v%d, v%d' % (v, t), 's_nop 1', 'v_add_f32 v%d, v%d, v%d' % (v, v, t),
        'ds_write_b32 v10, v%d offset:%d' % (v, slotoff), 's_waitcnt lgkmcnt(0)', 's_barrier')
    for i in range(9): k.e('ds_read_b32 v%d, v11 offset:%d' % (t + i, slotoff + 32 * i))
    k.e('s_waitcnt lgkmcnt(0)')
    for i in range(1, 9): k.e('v_add_f32 v%d, v%d, v%d' % (t, t, t + i))
    k.e('v_mov_b32 v%d, v%d' % (v, t))

def row_kernel(name, mode, nsplit=5):
    k = K(name, 128)
    k.guard(256)
    k.ptr(4, 'x'); k.ptr(6, 'ws'); k.ptr(8, 'out')
    k.stamp(0)
    k.e('v_and_b32 v1, 63, v0', 'v_lshrrev_b32 v2, 6, v0',
        'v_and_b32 v3, 7, v1', 'v_bfe_u32 v4, v1, 3, 1', 'v_bfe_u32 v5, v1, 4, 1', 'v_lshrrev_b32 v6, 5, v1',
        'v_lshl_add_u32 v6, v2, 1, v6',
        's_lshr_b32 s10, s2, 2', 's_and_b32 s11, s2, 3', 's_lshl_b32 s11, s11, 3',
        'v_lshlrev_b32 v7, 5, v6', 'v_lshl_add_u32 v7, v5, 4, v7', 'v_lshl_add_u32 v7, v4, 3, v7',
        's_lshl_b32 s3, s2, 3', 'v_add_u32 v8, s3, v3', 'v_mul_u32_u24 v8, 1152, v8',
        'v_lshl_add_u32 v8, v7, 1, v8',
        'v_lshlrev_b32 v9, 5, v4', 'v_add_u32 v9, s11, v9', 'v_add_u32 v9, v9, v3',
        'v_lshlrev_b32 v10, 5, v2', 'v_lshl_add_u32 v10, v3, 2, v10', 'v_lshlrev_b32 v11, 2, v3',
        'v_lshlrev_b32 v12, 2, v7',
        's_mul_i32 s12, s10, 18', 'v_add_u32 v13, s12, v6', 'v_lshlrev_b32 v13, 2, v13',
        'v_lshl_add_u32 v13, v5, 1, v13', 'v_lshlrev_b32 v13, 10, v13', 'v_lshl_add_u32 v13, v9, 4, v13',
        's_mul_i32 s12, s10, 36', 'v_lshl_add_u32 v14, v6, 1, v5', 'v_add_u32 v14, s12, v14',
        'v_lshlrev_b32 v14, 10, v14', 'v_lshl_add_u32 v14, v9, 4, v14',
        's_waitcnt lgkmcnt(0)')
    k.srd(16, 6, WS_MOD, 3456 * 4)
    k.srd(20, 6, WS_PART, nsplit * PART_SZ)
    k.srd(24, 6, WS_X1, 2048 * 1152)
    if mode == 'final':
        k.srd(28, 8, 0, 2048 * 1152)
    else:
        k.srd(28, 6, WS_HF if mode == 'ln1' else WS_H2F, 2048 * 1152)
    k.srd(32, 4, 0, 2048 * 1152)
    xs = 's[24:27]' if mode == 'final' else 's[32:35]'
    k.e('buffer_load_dwordx4 v[16:19], v8, %s, 0 offen' % xs)
    def ldmod(dst, idx):
        k.e('s_mov_b32 s36, %d' % (idx * 2304),
            'buffer_load_dwordx4 %s, v12, s[16:19], s36 offen' % vr(dst),
            'buffer_load_dwordx4 %s, v12, s[16:19], s36 offen offset:16' % vr(dst + 4))
    if mode != 'ln1':
        ldmod(20, 2 if mode == 'mid' else 5)
        for sp in range(nsplit):
            k.e('s_mov_b32 s37, %d' % (sp * PART_SZ),
                'buffer_load_dwordx4 %s, v13, s[20:23], s37 offen' % vr(48 + 8 * sp),
                'buffer_load_dwordx4 %s, v13, s[20:23], s37 offen offset:1024' % vr(52 + 8 * sp))
    if mode != 'final':
        ldmod(28, 0 if mode == 'ln1' else 3); ldmod(36, 1 if mode == 'ln1' else 4)
    k.stamp(1)
    k.e('s_waitcnt vmcnt(0)')
    k.stamp(2)
    unpack8(k, 96, 16)
    if mode != 'ln1':
        for sp in range(1, nsplit):
            for j in range(8): k.e('v_add_f32 v%d, v%d, v%d' % (48 + j, 48 + j, 48 + 8 * sp + j))
        round8(k, 48, 104)
        for j in range(8): k.e('v_mul_f32 v%d, v%d, v%d' % (48 + j, 48 + j, 20 + j))
        round8(k, 48, 104)
        for j in range(8): k.e('v_add_f32 v%d, v%d, v%d' % (96 + j, 96 + j, 48 + j))
        round8(k, 96, 104)
        if mode == 'final':
            k.e('buffer_store_dwordx4 v[104:107], v8, s[28:31], 0 offen', 's_waitcnt vmcnt(0)')
            k.e('s_mov_b32 s40, 0'); k.dump(3)
            return k
        k.e('buffer_store_dwordx4 v[104:107], v8, s[24:27], 0 offen')
    k.e('v_add_f32 v108, v96, v97')
    for j in range(2, 8): k.e('v_add_f32 v108, v108, v%d' % (96 + j))
    row_reduce(k, 108, 0, 112)
    k.e('v_mul_f32 v108, 0x3ae38e39, v108')
    for j in range(8): k.e('v_sub_f32 v%d, v%d, v108' % (96 + j, 96 + j))
    k.e('v_mul_f32 v109, v96, v96')
    for j in range(1, 8): k.e('v_fmac_f32 v109, v%d, v%d' % (96 + j, 96 + j))
    row_reduce(k, 109, 512, 112)
    k.e('v_mov_b32 v110, 0x3727c5ac', 'v_fmac_f32 v110, 0x3ae38e39, v109', 'v_rsq_f32 v110, v110', 's_nop 0')
    for j in range(8):
        k.e('v_add_f32 v%d, 1.0, v%d' % (36 + j, 36 + j))
    round8(k, 36, 112)
    for j in range(8):
        k.e('v_mul_f32 v%d, v%d, v110' % (96 + j, 96 + j), 'v_fma_f32 v%d, v%d, v%d, v%d' % (96 + j, 96 + j, 36 + j, 28 + j))
    for i in range(4): k.e('v_cvt_pk_bf16_f32 v%d, v%d, v%d' % (112 + i, 96 + 2 * i, 97 + 2 * i))
    k.e('buffer_store_dwordx4 v[112:115], v14, s[28:31], 0 offen', 's_waitcnt vmcnt(0)')
    k.e('s_mov_b32 s40, 0'); k.dump(3)
    return k
```

```python
import sys, importlib
from base import *
import gemm, attn
def build(only=None):
    ks = [(gemv_kernel(), 108, 256, 8192 + 1024),
          (row_kernel('k1_ln_kernel', 'ln1'), 256, 576, 1024),
          (attn.attn_kernel('k2_attn_kernel'), 256, 256, 131072),
          (gemm.splitk_kernel('k3_oproj_kernel', 'wo', WS_OF, 256, 13), 240, 512, 49152),
          (row_kernel('k4_mid_kernel', 'mid'), 256, 576, 1024),
          (gemm.gateup_kernel('k5_gateup_kernel'), 256, 512, 148480),
          (gemm.splitk_kernel('k6_down_kernel', 'wd', WS_ACT, 288, 15), 240, 512, 49152),
          (row_kernel('k7_final_kernel', 'final'), 256, 576, 1024)]
    if 'extra4' in OPT:
        for i in range(4):
            e = K('k8%d_nop_kernel' % i, 8); e.guard(0); e.e('s_nop 0'); ks.insert(4, (e, 256, 256, 0))
    if 'extra4b' in OPT:
        for i in range(4):
            e = K('j%d_nop_kernel' % i, 8); e.guard(0); e.e('s_nop 0'); ks.insert(0, (e, 256, 256, 0))
    hdr = open('adaLN_cond__gqa_block_cached__swiglu_ffn__prompt.s.ref').read().split('; Override')[0]
    o = hdr
    for k, g, b, l in ks:
        o += '; @launch kernel=%s grid=(%d,1,1) block=(%d,1,1) lds=%d\n' % (k.name, g, b, l)
    o += '.amdgcn_target "amdgcn-amd-amdhsa--gfx950"\n'
    for k, g, b, l in ks: o += k.text()
    return o
if __name__ == '__main__':
    out = sys.argv[1] if len(sys.argv) > 1 else 'adaLN_cond__gqa_block_cached__swiglu_ffn__prompt.s'
    open(out, 'w').write(build())
```
